```python
import torch

def _softmax(x, axis=-1):
    return torch.softmax(x, dim=axis)
def _gelu(x):
    return torch.nn.functional.gelu(x, approximate="tanh")
def _silu(x):
    return torch.nn.functional.silu(x)
def _sigmoid(x):
    return torch.sigmoid(x)
def _layernorm(x, axis=-1, eps=1e-5):
    m = x.mean(dim=axis, keepdim=True)
    v = x.var(dim=axis, keepdim=True, unbiased=False)
    return (x - m) / torch.sqrt(v + eps)
def _scatter_add(tgt, idx, src, axis=0):
    return tgt.clone().index_add_(axis, idx, src)
def _segment_sum(src, seg, n):
    out = torch.zeros((n,) + src.shape[1:], dtype=src.dtype)
    return out.index_add_(0, seg, src)
def _pad(x, pw):
    flat = tuple(v for pair in reversed(pw) for v in pair)
    return torch.nn.functional.pad(x, flat)

kernel_name = 'gated_mix__ssm_conv_s5__ssm_conv_s5__prompt'

def setup_inputs():

    _w = (lambda a: (lambda t: t.to(torch.bfloat16) if t.is_floating_point() else t)(torch.as_tensor(a)))
    def _A_setup():
        B, S, D = 1, 2048, 1024
        P = D
        Lambda_re = -0.5 * (lambda _x: torch.exp(torch.as_tensor(_x)))((lambda *s: torch.randn(*s, dtype=torch.bfloat16) * 0.2)(P))
        Lambda_im = (lambda *s: torch.randn(*s, dtype=torch.bfloat16) * 0.4)(P) * 1.0
        B_re = (lambda *s: torch.randn(*s, dtype=torch.bfloat16) * 0.2)(P, D) * (D ** -0.5)
        B_im = (lambda *s: torch.randn(*s, dtype=torch.bfloat16) * 0.2)(P, D) * (D ** -0.5)
        C_re = (lambda *s: torch.randn(*s, dtype=torch.bfloat16) * 0.2)(D, P) * (P ** -0.5)
        C_im = (lambda *s: torch.randn(*s, dtype=torch.bfloat16) * 0.2)(D, P) * (P ** -0.5)
        log_dt = (lambda *s: torch.randn(*s, dtype=torch.bfloat16) * 0.2)(P) * 0.3 - 2.0
        Dskip = (lambda *s: torch.randn(*s, dtype=torch.bfloat16) * 0.05)(D)
        return {
            "x": _w((lambda *s: torch.randn(*s, dtype=torch.bfloat16) * 0.05)(B, S, D)),
            "Lambda_re": _w(Lambda_re),
            "Lambda_im": _w(Lambda_im),
            "B_re": _w(B_re),
            "B_im": _w(B_im),
            "C_re": _w(C_re),
            "C_im": _w(C_im),
            "log_dt": _w(log_dt),
            "Dskip": _w(Dskip),
        }
    _A_in = _A_setup()

    def _B_setup():
        B, S, D = 1, 2048, 1024
        P = D
        Lambda_re = -0.5 * (lambda _x: torch.exp(torch.as_tensor(_x)))((lambda *s: torch.randn(*s, dtype=torch.bfloat16) * 0.2)(P))
        Lambda_im = (lambda *s: torch.randn(*s, dtype=torch.bfloat16) * 0.4)(P) * 1.0
        B_re = (lambda *s: torch.randn(*s, dtype=torch.bfloat16) * 0.2)(P, D) * (D ** -0.5)
        B_im = (lambda *s: torch.randn(*s, dtype=torch.bfloat16) * 0.2)(P, D) * (D ** -0.5)
        C_re = (lambda *s: torch.randn(*s, dtype=torch.bfloat16) * 0.2)(D, P) * (P ** -0.5)
        C_im = (lambda *s: torch.randn(*s, dtype=torch.bfloat16) * 0.2)(D, P) * (P ** -0.5)
        log_dt = (lambda *s: torch.randn(*s, dtype=torch.bfloat16) * 0.2)(P) * 0.3 - 2.0
        Dskip = (lambda *s: torch.randn(*s, dtype=torch.bfloat16) * 0.05)(D)
        return {
            "x": _w((lambda *s: torch.randn(*s, dtype=torch.bfloat16) * 0.05)(B, S, D)),
            "Lambda_re": _w(Lambda_re),
            "Lambda_im": _w(Lambda_im),
            "B_re": _w(B_re),
            "B_im": _w(B_im),
            "C_re": _w(C_re),
            "C_im": _w(C_im),
            "log_dt": _w(log_dt),
            "Dskip": _w(Dskip),
        }
    _B_in = _B_setup()

    return {
        "A_x": _A_in["x"],
        "A_Lambda_re": _A_in["Lambda_re"],
        "A_Lambda_im": _A_in["Lambda_im"],
        "A_B_re": _A_in["B_re"],
        "A_B_im": _A_in["B_im"],
        "A_C_re": _A_in["C_re"],
        "A_C_im": _A_in["C_im"],
        "A_log_dt": _A_in["log_dt"],
        "A_Dskip": _A_in["Dskip"],
        "B_x": _B_in["x"],
        "B_Lambda_re": _B_in["Lambda_re"],
        "B_Lambda_im": _B_in["Lambda_im"],
        "B_B_re": _B_in["B_re"],
        "B_B_im": _B_in["B_im"],
        "B_C_re": _B_in["C_re"],
        "B_C_im": _B_in["C_im"],
        "B_log_dt": _B_in["log_dt"],
        "B_Dskip": _B_in["Dskip"],
        "gate_w": _w((lambda *s: torch.randn(*s, dtype=torch.bfloat16) * 0.05)(1024) * 16.0),
    }

def reference(A_x, A_Lambda_re, A_Lambda_im, A_B_re, A_B_im, A_C_re, A_C_im, A_log_dt, A_Dskip, B_x, B_Lambda_re, B_Lambda_im, B_B_re, B_B_im, B_C_re, B_C_im, B_log_dt, B_Dskip, gate_w):
    def _A_ref(x, Lambda_re, Lambda_im, B_re, B_im, C_re, C_im, log_dt, Dskip):
        Bsz, L, H = x.shape
        Lam = Lambda_re + 1j * Lambda_im
        Bmat = B_re + 1j * B_im
        Cmat = C_re + 1j * C_im
        dt = torch.exp(log_dt)
        Lam_bar = torch.exp(dt * Lam)
        B_bar = ((Lam_bar - 1.0) / Lam)[:, None] * Bmat
        Bu = torch.einsum("bld,pd->blp", x + 0j, B_bar)
        h = torch.zeros_like(Bu[:, 0, :])
        hs = []
        for t in range(L):
            h = Lam_bar[None, :] * h + Bu[:, t, :]
            hs.append(h)
        hseq = torch.stack(hs, 1)
        y = 2.0 * torch.einsum("blp,dp->bld", hseq, Cmat).real + x * Dskip[None, None, :]
        return y

    def _B_ref(x, Lambda_re, Lambda_im, B_re, B_im, C_re, C_im, log_dt, Dskip):
        Bsz, L, H = x.shape
        Lam = Lambda_re + 1j * Lambda_im
        Bmat = B_re + 1j * B_im
        Cmat = C_re + 1j * C_im
        dt = torch.exp(log_dt)
        Lam_bar = torch.exp(dt * Lam)
        B_bar = ((Lam_bar - 1.0) / Lam)[:, None] * Bmat
        Bu = torch.einsum("bld,pd->blp", x + 0j, B_bar)
        h = torch.zeros_like(Bu[:, 0, :])
        hs = []
        for t in range(L):
            h = Lam_bar[None, :] * h + Bu[:, t, :]
            hs.append(h)
        hseq = torch.stack(hs, 1)
        y = 2.0 * torch.einsum("blp,dp->bld", hseq, Cmat).real + x * Dskip[None, None, :]
        return y

    x = A_x
    g = _sigmoid((x * gate_w).sum(-1, keepdims=True))
    a = _A_ref(x, A_Lambda_re, A_Lambda_im, A_B_re, A_B_im, A_C_re, A_C_im, A_log_dt, A_Dskip)
    b = _B_ref(x, B_Lambda_re, B_Lambda_im, B_B_re, B_B_im, B_C_re, B_C_im, B_log_dt, B_Dskip)
    return g * a + (1 - g) * b
```

```python
NAME = "gated_mix__ssm_conv_s5__ssm_conv_s5__prompt"
HEADER = open("cdna_kernels/" + NAME + ".s.ref").read().split("; Override launch geometry")[0]

class Asm:
    def __init__(self):
        self.lines = []
    def __call__(self, s=""):
        for l in s.split("\n"):
            self.lines.append(l)
    def emit(self, s):
        self.lines.append("    " + s)
    def label(self, s):
        self.lines.append(s + ":")
    def text(self):
        return "\n".join(self.lines) + "\n"

def kernel_begin(a, name):
    a(f".globl {name}\n.p2align 8\n.type {name},@function\n{name}:")

def kernel_desc(name, vgpr, sgpr, accum=None, wgy=False):
    if accum is None:
        accum = min(256, (vgpr + 3) // 4 * 4)
    s = f""".amdhsa_kernel {name}
  .amdhsa_next_free_vgpr {vgpr}
  .amdhsa_next_free_sgpr {sgpr}
  .amdhsa_accum_offset {accum}
  .amdhsa_group_segment_fixed_size 0
  .amdhsa_kernarg_size 176
  .amdhsa_user_sgpr_count 2
  .amdhsa_user_sgpr_kernarg_segment_ptr 1
  .amdhsa_system_sgpr_workgroup_id_x 1
"""
    if wgy:
        s += "  .amdhsa_system_sgpr_workgroup_id_y 1\n"
    s += "  .amdhsa_float_denorm_mode_32 3\n"
    s += ".end_amdhsa_kernel\n"
    return s

def file_text(launches, body, descs):
    t = HEADER
    for (k, g, b, lds) in launches:
        if k is None:
            t += f"; @launch grid=({g[0]},{g[1]},{g[2]}) block=({b[0]},{b[1]},{b[2]}) lds={lds}\n"
        else:
            t += f"; @launch kernel={k} grid=({g[0]},{g[1]},{g[2]}) block=({b[0]},{b[1]},{b[2]}) lds={lds}\n"
    t += '.amdgcn_target "amdgcn-amd-amdhsa--gfx950"\n.text\n'
    t += body
    t += '.section .rodata,"a"\n'
    for d in descs:
        t += ".p2align 6\n" + d
    return t
```

```python
import sys
from asmlib import *

def vr(a, n): return f"v[{a}:{a+n-1}]"

WS_H    = 0
WS_G    = 16 << 20
WS_AGG  = WS_G + (64 << 10)
WS_FLG  = WS_AGG + (256 << 10)
WS_HF   = WS_FLG + (128 << 10)
WS_XID  = WS_HF + (8 << 10)
WS_XCH  = 17 << 20
WS_USED = 25 << 20

K1_STAGE = 49152
K1_SEG   = 3 * K1_STAGE
K2_HP    = 1088
K2_COFF  = 16 * K2_HP
K2_STAGE = K2_COFF + 128 * 128
K2_NST   = 4
K1_NONCE = K1_SEG + 5120
LDS_SIZE = K1_NONCE + 64

class LdsTracker:
    def __init__(self, a): self.a = a; self.q = []
    def read(self, text, dst): self.a.emit(text); self.q.append(dst)
    def need(self, regs):
        idx = -1
        for i, d in enumerate(self.q):
            if d in regs: idx = i
        if idx >= 0:
            n = len(self.q) - 1 - idx
            assert n <= 15
            self.a.emit(f"s_waitcnt lgkmcnt({n})"); self.q = self.q[idx+1:]
    def drain(self):
        if self.q: self.a.emit("s_waitcnt lgkmcnt(0)"); self.q = []

def gen(a, opt):
    e = a.emit
    stamps = opt.get("stamps", False)
    rot = opt.get("rot", 1)
    NK = 16; NK2 = 32; PD = K2_NST - 1
    HB = opt.get("hbase", 0)
    WS_USED = (HB + (16 << 20)) if HB else globals()["WS_USED"]
    def stamp(i):
        if stamps: e(f"s_memrealtime s[{80+2*i}:{81+2*i}]")
    LIMIT = opt.get("spin_limit", 1 << 18)
    def guard_init(): e("s_mov_b32 s98, 0")
    def guard(): e("s_add_u32 s98, s98, 1"); e(f"s_cmp_gt_u32 s98, {LIMIT}"); e("s_cbranch_scc1 L_end")
    kernel_begin(a, NAME + "_kernel")
    e("s_cmp_ge_u32 s2, 256")
    e("s_cbranch_scc1 L_end")
    stamp(0)
    e("s_load_dwordx2 s[4:5], s[0:1], 0")
    e("s_load_dwordx4 s[24:27], s[0:1], 24")
    e("s_load_dwordx4 s[28:31], s[0:1], 96")
    e("s_load_dwordx4 s[32:35], s[0:1], 160")
    e("v_lshrrev_b32 v1, 6, v0")
    e("v_and_b32 v2, 63, v0")
    e("s_and_b32 s16, s2, 7")
    e("v_readfirstlane_b32 s3, v1")
    e("s_lshr_b32 s17, s2, 3")
    e("s_and_b32 s70, s16, 1")
    e("s_lshr_b32 s18, s16, 1")
    e("s_lshl_b32 s13, s18, 1"); e("s_and_b32 s20, s17, 1"); e("s_add_u32 s13, s13, s20")
    e("s_lshr_b32 s14, s17, 1"); e("s_lshl_b32 s20, s70, 4"); e("s_add_u32 s14, s14, s20")
    e("s_lshl_b32 s71, s18, 2"); e("s_and_b32 s20, s17, 3"); e("s_add_u32 s71, s71, s20")
    e("s_lshr_b32 s72, s17, 2")
    e("s_and_b32 s19, s3, 3")
    if rot:
        e("s_lshl_b32 s15, s18, 9"); e("s_lshl_b32 s20, s70, 10"); e("s_add_u32 s15, s15, s20")
    else:
        e("s_mov_b32 s15, 0")
    e("s_cmp_ge_u32 s3, 4")
    e("s_cbranch_scc0 L_compute")

    e("s_load_dwordx2 s[36:37], s[0:1], 144")
    e("s_load_dwordx4 s[60:63], s[0:1], 40")
    e("s_load_dwordx4 s[64:67], s[0:1], 112")
    e("v_lshrrev_b32 v3, 3, v2")
    e("v_and_b32 v4, 7, v2")
    e("v_lshrrev_b32 v5, 1, v3"); e("v_xor_b32 v5, v5, v4"); e("v_lshlrev_b32 v5, 4, v5")
    e("v_xor_b32 v6, 64, v5")
    e("v_lshrrev_b32 v7, 2, v3"); e("v_lshlrev_b32 v7, 5, v7")
    e("v_and_b32 v8, 1, v3"); e("v_lshlrev_b32 v8, 4, v8"); e("v_add_u32 v7, v7, v8")
    e("v_bfe_u32 v8, v3, 1, 1"); e("v_add_u32 v7, v7, v8")
    e("s_lshl_b32 s20, s13, 8")
    e("s_lshr_b32 s21, s19, 1"); e("s_lshl_b32 s21, s21, 7"); e("s_add_u32 s20, s20, s21")
    e("s_and_b32 s21, s19, 1"); e("s_lshl_b32 s21, s21, 3"); e("s_add_u32 s20, s20, s21")
    e("v_add_u32 v7, s20, v7"); e("v_lshlrev_b32 v7, 11, v7")
    for q in range(8):
        qo = 64*(q & 1) + 2*(q >> 1)
        e(f"v_add_u32 v{40+q}, {qo*2048}, v7"); e(f"v_add_u32 v{40+q}, v{40+q}, v{6 if q&1 else 5}")
    e("s_and_b32 s20, s14, 15"); e("s_lshl_b32 s20, s20, 6")
    e("s_lshr_b32 s21, s19, 1"); e("s_lshl_b32 s21, s21, 5"); e("s_add_u32 s20, s20, s21")
    e("v_add_u32 v7, s20, v3"); e("v_lshlrev_b32 v7, 11, v7")
    for q in range(4):
        e(f"v_add_u32 v{48+q}, {q*8*2048}, v7"); e(f"v_add_u32 v{48+q}, v{48+q}, v{6 if q&1 else 5}")
    e("s_lshl_b32 s22, s19, 13")
    e("s_lshl_b32 s23, s19, 12"); e("s_add_u32 s23, s23, 32768")
    e("s_waitcnt lgkmcnt(0)")
    e("s_mov_b32 s6, 0x400000"); e("s_mov_b32 s7, 0x00020000")
    e("s_cmp_eq_u32 s70, 0")
    e("s_cselect_b32 s24, s24, s28"); e("s_cselect_b32 s25, s25, s29")
    e("s_cselect_b32 s26, s26, s30"); e("s_cselect_b32 s27, s27, s31")
    e("s_bitcmp1_b32 s19, 0")
    e("s_cselect_b32 s8, s26, s24"); e("s_cselect_b32 s9, s27, s25")
    e("s_mov_b32 s10, 0x200000"); e("s_mov_b32 s11, 0x00020000")
    def dma1(k):
        st = k % 3
        e(f"s_add_u32 s12, s15, {k*128}"); e("s_and_b32 s12, s12, 2047")
        for q in range(8):
            e(f"s_add_u32 m0, s22, {st*K1_STAGE + q*1024}"); e("s_nop 0")
            e(f"buffer_load_dwordx4 v{40+q}, s[4:7], s12 offen lds")
        for q in range(4):
            e(f"s_add_u32 m0, s23, {st*K1_STAGE + q*1024}"); e("s_nop 0")
            e(f"buffer_load_dwordx4 v{48+q}, s[8:11], s12 offen lds")
    dma1(0); dma1(1)
    e("s_mov_b32 s38, 2048"); e("s_mov_b32 s39, 0x00020000")
    e("s_mov_b32 s44, s34"); e("s_mov_b32 s45, s35"); e(f"s_mov_b32 s46, {WS_USED}"); e("s_mov_b32 s47, 0x00020000")
    e("v_lshlrev_b32 v52, 5, v2")
    e("v_lshlrev_b32 v53, 7, v2")
    e("s_lshl_b32 s40, s2, 3"); e("s_lshl_b32 s41, s19, 1"); e("s_add_u32 s40, s40, s41")
    e("s_lshl_b32 s41, s40, 11"); e("s_add_u32 s42, s41, 2048")
    e("s_lshr_b32 s68, s2, 6")
    e("s_mov_b32 s56, s60"); e("s_mov_b32 s57, s61")
    e("s_cmp_eq_u32 s68, 1"); e("s_cselect_b32 s56, s62, s56"); e("s_cselect_b32 s57, s63, s57")
    e("s_cmp_eq_u32 s68, 2"); e("s_cselect_b32 s56, s64, s56"); e("s_cselect_b32 s57, s65, s57")
    e("s_cmp_eq_u32 s68, 3"); e("s_cselect_b32 s56, s66, s56"); e("s_cselect_b32 s57, s67, s57")
    e("s_mov_b32 s58, 0x200000"); e("s_mov_b32 s59, 0x00020000")
    e("s_and_b32 s68, s2, 63"); e("s_lshl_b32 s68, s68, 2"); e("s_add_u32 s68, s68, s19"); e("s_lshl_b32 s68, s68, 13")
    cpf = opt.get("cpf", "vec")
    if cpf == "smem":
        e("s_add_u32 s56, s56, s68"); e("s_addc_u32 s57, s57, 0")
    GK = opt.get("gk", 9)
    def gate_loads():
        e("buffer_load_dwordx4 v[56:59], v52, s[4:7], s41 offen")
        e("buffer_load_dwordx4 v[60:63], v52, s[4:7], s41 offen offset:16")
        e("buffer_load_dwordx4 v[64:67], v52, s[4:7], s42 offen")
        e("buffer_load_dwordx4 v[68:71], v52, s[4:7], s42 offen offset:16")
        e("buffer_load_dwordx4 v[72:75], v52, s[36:39], 0 offen")
        e("buffer_load_dwordx4 v[76:79], v52, s[36:39], 0 offen offset:16")
        if cpf == "vec": e("buffer_load_dword v55, v53, s[56:59], s68 offen")
        return 7 if cpf == "vec" else 6
    if opt.get("tlbwarm", 1):
        e("s_add_u32 s30, s56, s68"); e("s_addc_u32 s31, s57, 0"); e("s_load_dword s69, s[30:31], 0")
        e("s_load_dword s69, s[36:37], 0")
        e("s_add_u32 s30, s4, s41"); e("s_addc_u32 s31, s5, 0"); e("s_load_dword s69, s[30:31], 0")
    vq1 = [0]*12 + [1]*12
    def v1wait(tag):
        idx = max(i for i, t in enumerate(vq1) if t == tag)
        e(f"s_waitcnt vmcnt({len(vq1) - 1 - idx})"); del vq1[:idx+1]
    v1wait(0)
    e("s_barrier")
    spread = opt.get("spread", 1)
    for k in range(NK):
        if k + 2 < NK: dma1(k + 2); vq1.extend([k + 2]*12)
        if cpf == "spread":
            ks = opt.get("spread_from", 0); n = 16 - ks
            per = (64 + n - 1) // n
            if k >= ks and (k - ks)*per < 64:
                cnt = min(per, 64 - (k - ks)*per)
                e(f"s_add_u32 s69, s68, {(k - ks)*per*128}")
                e(f"s_mov_b64 exec, {(1 << cnt) - 1}"); e("buffer_load_dword v55, v53, s[56:59], s69 offen"); e("s_mov_b64 exec, -1")
                vq1.append("t")
        if GK is not None and k == GK:
            vq1.extend(["g"]*gate_loads())
        if k + 1 < NK:
            v1wait(k + 1)
            e("s_barrier")
    e("s_barrier")
    stamp(1)
    e(f"v_mov_b32 v14, {K1_NONCE}"); e("ds_read_b32 v15, v14")
    e("s_barrier")
    if GK is None: gate_loads()
    e(f"s_waitcnt vmcnt({1 if (cpf == 'vec' and GK is None) else 0}) lgkmcnt(0)")
    for d in range(8):
        e(f"v_lshlrev_b32 v{80+2*d}, 16, v{72+d}"); e(f"v_and_b32 v{81+2*d}, 0xffff0000, v{72+d}")
    def gate_row(xr, idx):
        acc = 96
        e(f"v_mov_b32 v{acc}, 0")
        for d in range(8):
            e(f"v_lshlrev_b32 v97, 16, v{xr+d}"); e(f"v_and_b32 v98, 0xffff0000, v{xr+d}")
            e(f"v_mul_f32 v97, v97, v{80+2*d}"); e(f"v_mul_f32 v98, v98, v{81+2*d}")
            e(f"v_cvt_pk_bf16_f32 v99, v97, v98")
            e(f"v_lshlrev_b32 v97, 16, v99"); e(f"v_and_b32 v98, 0xffff0000, v99")
            e(f"v_add_f32 v{acc}, v{acc}, v97"); e(f"v_add_f32 v{acc}, v{acc}, v98")
        e("s_nop 1")
        for m in ("quad_perm:[1,0,3,2]", "quad_perm:[2,3,0,1]", "row_half_mirror", "row_mirror"):
            e(f"v_add_f32_dpp v{acc}, v{acc}, v{acc} {m} row_mask:0xf bank_mask:0xf"); e("s_nop 1")
        e(f"v_readlane_b32 s48, v{acc}, 0"); e(f"v_readlane_b32 s49, v{acc}, 16")
        e(f"v_readlane_b32 s50, v{acc}, 32"); e(f"v_readlane_b32 s51, v{acc}, 48")
        e("s_nop 1")
        e("v_mov_b32 v97, s48"); e("v_add_f32 v97, s49, v97"); e("v_mov_b32 v98, s50"); e("v_add_f32 v98, s51, v98")
        e("v_add_f32 v97, v97, v98")
        e("v_cvt_pk_bf16_f32 v97, v97, v97"); e("v_lshlrev_b32 v97, 16, v97")
        e("v_mul_f32 v97, 0xbfb8aa3b, v97"); e("v_exp_f32 v97, v97"); e("s_nop 0")
        e("v_add_f32 v97, 1.0, v97"); e("v_rcp_f32 v97, v97"); e("s_nop 0")
        e("v_cvt_pk_bf16_f32 v97, v97, v97"); e("v_lshlrev_b32 v100, 16, v97")
        e("v_sub_f32 v98, 1.0, v100"); e("v_cvt_pk_bf16_f32 v98, v98, v98"); e("v_lshlrev_b32 v102, 16, v98")
        e("v_mov_b32 v101, v15"); e("v_mov_b32 v103, v15")
        e(f"s_add_u32 s43, s40, {idx}"); e("s_lshl_b32 s43, s43, 4"); e(f"s_add_u32 s43, s43, {WS_G}")
        e("v_mov_b32 v97, 0")
        e("s_mov_b64 s[52:53], exec"); e("s_mov_b64 exec, 1")
        e("buffer_store_dwordx4 v[100:103], v97, s[44:47], s43 offen sc0 sc1")
        e("s_mov_b64 exec, s[52:53]")
    gate_row(56, 0); gate_row(64, 1)
    stamp(2)
    e("v_lshlrev_b32 v3, 4, v2")
    e("v_lshrrev_b32 v4, 3, v2")
    e("s_lshl_b32 s20, s72, 7"); e("s_lshl_b32 s21, s19, 5"); e("s_add_u32 s20, s20, s21")
    e("v_add_u32 v8, s20, v4"); e("v_lshlrev_b32 v8, 11, v8")
    for q in range(4):
        e(f"v_add_u32 v{40+q}, {q*8*2048}, v8"); e(f"v_add_u32 v{40+q}, v{40+q}, v{6 if q&1 else 5}")
    e("s_lshl_b32 s20, s71, 6"); e("s_lshl_b32 s21, s70, 5"); e("s_add_u32 s20, s20, s21"); e("s_lshl_b32 s20, s20, 14")
    e("s_lshl_b32 s21, s19, 12"); e("s_add_u32 s20, s20, s21")
    if HB: e(f"s_add_u32 s20, s20, {HB}")
    e(f"s_mul_i32 s22, s19, {4*K2_HP}")
    e("s_lshl_b32 s23, s19, 12"); e(f"s_add_u32 s23, s23, {K2_COFF}")
    e("s_cmp_eq_u32 s70, 0")
    e("s_cselect_b32 s8, s60, s64"); e("s_cselect_b32 s9, s61, s65"); e("s_mov_b32 s10, 0x200000"); e("s_mov_b32 s11, 0x00020000")
    e("s_cselect_b32 s36, s62, s66"); e("s_cselect_b32 s37, s63, s67"); e("s_mov_b32 s38, 0x200000"); e("s_mov_b32 s39, 0x00020000")
    e("s_load_dwordx2 s[60:61], s[0:1], 64"); e("s_load_dwordx2 s[64:65], s[0:1], 136")
    e("s_mov_b32 s62, 2048"); e("s_mov_b32 s63, 0x00020000"); e("s_mov_b32 s66, 2048"); e("s_mov_b32 s67, 0x00020000")
    e("v_lshlrev_b32 v48, 2, v2")
    e("s_lshl_b32 s28, s72, 8")
    e("v_lshrrev_b32 v49, 5, v2"); e("v_lshlrev_b32 v49, 6, v49"); e("v_and_b32 v50, 31, v2"); e("v_add_u32 v49, v49, v50"); e("v_lshlrev_b32 v49, 4, v49")
    e("s_lshl_b32 s29, s71, 7"); e("s_lshl_b32 s25, s70, 5"); e("s_add_u32 s29, s29, s25"); e("s_lshl_b32 s29, s29, 4"); e(f"s_add_u32 s29, s29, {WS_G}")
    e("s_waitcnt lgkmcnt(0)")
    def dma2H(k):
        st = k % K2_NST
        for q in range(4):
            e(f"s_add_u32 m0, s22, {st*K2_STAGE + q*K2_HP}")
            e(f"s_add_u32 s12, s20, {(0 if opt.get('fakeH') else k*16384) + q*1024}")
            e(f"buffer_load_dwordx4 v3, s[44:47], s12 offen lds")
    def dma2C(k):
        st = k % K2_NST
        srd = "s[8:11]" if (k < 16 or opt.get('fakeC')) else "s[36:39]"
        e(f"s_mov_b32 s12, {0 if opt.get('fakeC') else (k & 15)*128}")
        for q in range(4):
            e(f"s_add_u32 m0, s23, {st*K2_STAGE + q*1024}"); e("s_nop 0")
            e(f"buffer_load_dwordx4 v{40+q}, {srd}, s12 offen lds")
    e("v_lshrrev_b32 v10, 4, v2"); e("v_and_b32 v11, 15, v2")
    for q in range(4):
        e(f"v_add_u32 v12, {4*q}, v10"); e("v_xor_b32 v12, v12, v11"); e("v_lshlrev_b32 v12, 4, v12")
        e(f"v_lshl_add_u32 v{44+q}, v10, 11, v12")
    e("s_lshl_b32 s27, s71, 7"); e("s_lshr_b32 s25, s19, 1"); e("s_lshl_b32 s25, s25, 6"); e("s_add_u32 s27, s27, s25")
    e("s_lshl_b32 s25, s70, 5"); e("s_add_u32 s27, s27, s25"); e("s_and_b32 s25, s19, 1"); e("s_lshl_b32 s25, s25, 4"); e("s_add_u32 s27, s27, s25")
    e("s_lshl_b32 s27, s27, 11"); e("s_lshl_b32 s25, s72, 8"); e("s_add_u32 s27, s27, s25")
    e("s_lshl_b32 s26, s19, 12")
    if opt.get("tlbwarm2", 1):
        e("s_load_dword s69, s[60:61], 0"); e("s_load_dword s69, s[64:65], 0")
        e("s_add_u32 s30, s4, s27"); e("s_addc_u32 s31, s5, 0"); e("s_load_dword s69, s[30:31], 0")
    e("s_lshl_b32 s24, s16, 2"); e("s_and_b32 s25, s71, 3"); e("s_add_u32 s24, s24, s25"); e("s_lshl_b32 s24, s24, 7"); e(f"s_add_u32 s24, s24, {WS_HF}")
    e("v_and_b32 v9, 31, v2"); e("v_lshlrev_b32 v9, 2, v9")
    if opt.get("earlyC", 1):
        for k in range(PD): dma2C(k)
    e("s_barrier")
    if opt.get("delaypoll"):
        e(f"s_sleep {opt['delaypoll']}")
    if opt.get("onepoll"):
        e("s_cmp_lg_u32 s19, 0"); e("s_cbranch_scc1 LL_hg")
    guard_init()
    a.label("LL_hp")
    guard()
    e("buffer_load_dword v10, v9, s[44:47], s24 offen sc0 sc1")
    e("s_waitcnt vmcnt(0)")
    e("v_cmp_ne_u32 vcc, v10, v15"); e("s_nop 4"); e("s_cbranch_vccz LL_hg")
    e(f"s_sleep {opt.get('pollsleep', 1)}"); e("s_branch LL_hp")
    a.label("LL_hg")
    if opt.get("onepoll"): e("s_barrier")
    stamp(3)
    vq = []
    def vissue(tag, n): vq.extend([tag]*n)
    def vwait(tag):
        idx = max(i for i, t in enumerate(vq) if t == tag)
        n = len(vq) - 1 - idx
        e(f"s_waitcnt vmcnt({n})"); del vq[:idx+1]
    if opt.get("earlyC", 1):
        for k in range(PD): dma2H(k); vissue(k, 4)
    else:
        for k in range(PD): dma2H(k); dma2C(k); vissue(k, 8)
    vwait(0)
    stamp(4)
    e("s_barrier")
    tlb = opt.get("tlb", 1)
    for k in range(NK2):
        if k + PD < NK2:
            dma2H(k + PD); dma2C(k + PD); vissue(k + PD, 8)
        if tlb and k + tlb < NK2:
            e(f"s_add_u32 s12, s20, {(k + tlb)*16384}")
            e("s_mov_b64 exec, 1"); e("buffer_load_dword v54, v3, s[44:47], s12 offen"); e("s_mov_b64 exec, -1"); vissue("t", 1)
        if k == opt.get('xk', NK2 - PD):
            for q in range(4):
                e(f"s_add_u32 m0, s26, {q*1024}"); e(f"s_add_u32 s12, s27, {q*4*2048}")
                e(f"buffer_load_dwordx4 v{44+(q&3)}, s[4:7], s12 offen lds")
            e("s_cmp_eq_u32 s19, 0"); e(f"s_cbranch_scc0 LL_t1")
            e("s_mov_b32 m0, 16384"); e("s_nop 0"); e("buffer_load_dword v48, s[60:63], s28 offen lds"); e("s_branch LL_t3")
            a.label("LL_t1")
            e("s_cmp_eq_u32 s19, 1"); e(f"s_cbranch_scc0 LL_t2")
            e("s_mov_b32 m0, 16640"); e("s_nop 0"); e("buffer_load_dword v48, s[64:67], s28 offen lds"); e("s_branch LL_t3")
            a.label("LL_t2")
            e("s_mov_b32 m0, 16896"); e("s_nop 0"); e("buffer_load_dwordx4 v49, s[44:47], s29 offen sc0 sc1 lds")
            a.label("LL_t3")
            vissue("x", 5)
        if k + 1 < NK2:
            vwait(k + 1)
            e("s_barrier")
    vwait("x")
    e("s_barrier")
    if stamps:
        e("s_waitcnt lgkmcnt(0)")
        e("s_lshl_b32 s41, s2, 2"); e("s_add_u32 s41, s41, s19"); e("s_lshl_b32 s41, s41, 6"); e("s_add_u32 s41, s41, 0x4200000")
        e("s_mov_b32 s46, 0x8000000"); e("v_mov_b32 v3, 0")
        for i in range(5):
            e(f"v_mov_b32 v4, s{80+2*i}"); e(f"buffer_store_dword v4, v3, s[44:47], s41 offen offset:{4*i}")
    e("s_endpgm")

    a.label("L_compute")
    e("s_load_dwordx4 s[36:39], s[0:1], 8")
    e("s_load_dwordx2 s[40:41], s[0:1], 56")
    e("s_load_dwordx4 s[48:51], s[0:1], 80")
    e("s_load_dwordx2 s[52:53], s[0:1], 128")
    e("s_getreg_b32 s73, hwreg(HW_REG_XCC_ID, 0, 4)")
    e("v_and_b32 v3, 15, v2")
    e("v_lshrrev_b32 v4, 4, v2")
    e("s_and_b32 s21, s19, 1")
    e("s_lshr_b32 s20, s19, 1")
    e("s_lshl_b32 s22, s21, 5")
    e("v_add_u32 v9, s22, v3")
    e("s_and_b32 s22, s14, 15"); e("s_lshl_b32 s22, s22, 6")
    e("v_add_u32 v10, s22, v9"); e("v_lshlrev_b32 v10, 1, v10")
    e("s_waitcnt lgkmcnt(0)")
    e("s_cmp_eq_u32 s70, 0")
    e("s_cselect_b32 s36, s36, s48"); e("s_cselect_b32 s37, s37, s49")
    e("s_cselect_b32 s38, s38, s50"); e("s_cselect_b32 s39, s39, s51")
    e("s_cselect_b32 s40, s40, s52"); e("s_cselect_b32 s41, s41, s53")
    P = lambda aa: 40 + 12*aa
    for aa in range(2):
        e(f"global_load_ushort v{112+4*aa}, v10, s[36:37] offset:{32*aa}")
        e(f"global_load_ushort v{113+4*aa}, v10, s[38:39] offset:{32*aa}")
        e(f"global_load_ushort v{114+4*aa}, v10, s[40:41] offset:{32*aa}")
    e("s_or_b32 s58, s2, s3"); e("s_cmp_lg_u32 s58, 0"); e("s_cbranch_scc1 LC_nononce")
    e("s_memrealtime s[54:55]"); e("s_waitcnt lgkmcnt(0)")
    e("s_or_b32 s54, s54, 1")
    e(f"v_mov_b32 v12, s54"); e("v_mov_b32 v13, 0")
    e("s_mov_b64 s[56:57], exec"); e("s_mov_b64 exec, 1")
    e("global_store_dword v13, v12, s[32:33] sc0 sc1")
    e("s_mov_b64 exec, s[56:57]")
    a.label("LC_nononce")
    e("v_bfe_u32 v5, v2, 1, 3"); e("v_xor_b32 v6, v4, v5"); e("v_lshlrev_b32 v6, 4, v6"); e("v_lshl_add_u32 v6, v3, 7, v6")
    e("s_lshl_b32 s22, s20, 14")
    e("s_lshl_b32 s23, s21, 13"); e("s_add_u32 s23, s23, 32768")
    for st in range(3):
        for s in range(2):
            e(f"v_xor_b32 v5, {64*s}, v6"); e(f"v_add_u32 v5, {st*K1_STAGE}, v5")
            e(f"v_add_u32 v{16 + st*2 + s}, s22, v5"); e(f"v_add_u32 v{22 + st*2 + s}, s23, v5")
    for r in range(128, 256): e(f"v_mov_b32 v{r}, 0")
    e("s_waitcnt vmcnt(1)")
    e("s_or_b32 s58, s2, s3"); e("s_cmp_eq_u32 s58, 0"); e("s_cbranch_scc1 LC_pw"); e("s_waitcnt vmcnt(0)"); a.label("LC_pw")
    def csq(dre, dim, are, aim):
        e(f"v_mul_f32 v{dre}, v{are}, v{are}"); e(f"v_mul_f32 v{dim}, v{are}, v{aim}")
        e(f"v_fma_f32 v{dre}, -v{aim}, v{aim}, v{dre}"); e(f"v_add_f32 v{dim}, v{dim}, v{dim}")
    LOG2E = 0x3fb8aa3b; LOG2E_LO = 0x32a57060
    def exp_f32(dst, src, t1, t2):
        e(f"v_mul_f32 v{t1}, 0x{LOG2E:x}, v{src}"); e(f"s_mov_b32 s58, 0x{LOG2E:x}")
        e(f"v_fma_f32 v{t2}, v{src}, s58, -v{t1}"); e(f"s_mov_b32 s58, 0x{LOG2E_LO:x}")
        e(f"v_fma_f32 v{t2}, v{src}, s58, v{t2}"); e(f"v_exp_f32 v{t1}, v{t1}")
        e(f"v_mul_f32 v{t2}, 0x3f317218, v{t2}"); e(f"v_fma_f32 v{dst}, v{t1}, v{t2}, v{t1}")
    for aa in range(2):
        p = P(aa); lr, li, ld = 112+4*aa, 113+4*aa, 114+4*aa
        e(f"v_lshlrev_b32 v{lr}, 16, v{lr}"); e(f"v_lshlrev_b32 v{li}, 16, v{li}"); e(f"v_lshlrev_b32 v{ld}, 16, v{ld}")
        exp_f32(64, ld, 65, 66)
        e("v_cvt_pk_bf16_f32 v64, v64, v64"); e("v_lshlrev_b32 v64, 16, v64")
        e(f"v_mul_f32 v65, v64, v{lr}"); e(f"v_mul_f32 v66, v64, v{li}")
        exp_f32(67, 65, 68, 69)
        e("v_mul_f32 v66, 0.15915494, v66"); e("v_rndne_f32 v68, v66"); e("v_sub_f32 v66, v66, v68")
        e("v_cos_f32 v68, v66"); e("v_sin_f32 v69, v66"); e("s_nop 0")
        e(f"v_mul_f32 v{p}, v67, v68"); e(f"v_mul_f32 v{p+1}, v67, v69")
        e(f"v_add_f32 v70, -1.0, v{p}")
        e(f"v_mul_f32 v71, v{lr}, v{lr}"); e(f"v_fma_f32 v71, v{li}, v{li}, v71"); e("v_rcp_f32 v71, v71")
        e(f"v_mul_f32 v72, v70, v{lr}"); e(f"v_fma_f32 v72, v{p+1}, v{li}, v72")
        e(f"v_mul_f32 v73, v{p+1}, v{lr}"); e(f"v_fma_f32 v73, -v70, v{li}, v73")
        e("v_add_f32 v71, v71, v71")
        e(f"v_mul_f32 v{p+2}, v72, v71"); e(f"v_mul_f32 v{p+3}, v73, v71")
        csq(64, 65, p, p+1); csq(66, 67, 64, 65); csq(64, 65, 66, 67)
        csq(p+4, p+5, 64, 65)
        csq(p+6, p+7, p+4, p+5)
        csq(64, 65, p+6, p+7); csq(66, 67, 64, 65); csq(p+8, p+9, 66, 67)
    e("s_barrier")
    stamp(1)
    if stamps: e("s_memtime s[100:101]")
    T = LdsTracker(a)
    fa = lambda idx: 64 + (idx % 4)*4
    fb = lambda p, n: 80 + p*16 + n*4
    acc = lambda m, n: 128 + (m*4 + n)*4
    Gs = [(k, s, m) for k in range(NK) for s in range(2) for m in range(8)]
    def rdA(g):
        k, s, m = Gs[g]; st = k % 3
        return (f"ds_read_b128 {vr(fa(g),4)}, v{16 + st*2 + s} offset:{m*2048}", fa(g))
    def rdB(k, s, n):
        st = k % 3; p = s & 1
        return (f"ds_read_b128 {vr(fb(p,n),4)}, v{22 + st*2 + s} offset:{(n>>1)*4096 + (n&1)*2048}", fb(p,n))
    D = 3
    for n in range(4): T.read(*rdB(0,0,n))
    for g in range(D): T.read(*rdA(g))
    for g, (k, s, m) in enumerate(Gs):
        p = s & 1
        if s == 0 and m == 0 and k == 10:
            e("v_mov_b32 v14, 0"); e("global_load_dword v15, v14, s[32:33] sc0 sc1")
        if s == 0 and m == 0 and k == 13:
            e("s_waitcnt vmcnt(0)")
            e("v_readfirstlane_b32 s74, v15")
            e("s_cmp_lg_u32 s3, 0"); e("s_cbranch_scc1 LC_noxid")
            e("s_cmp_eq_u32 s74, 0"); e("s_cbranch_scc1 LC_noxid")
            e("s_and_b32 s75, s74, 0xfffffff0"); e("s_or_b32 s75, s75, s73"); e("s_or_b32 s75, s75, 8")
            e("s_lshl_b32 s76, s16, 7"); e("s_lshl_b32 s77, s17, 2"); e("s_add_u32 s76, s76, s77"); e(f"s_add_u32 s76, s76, {WS_XID}")
            e("v_mov_b32 v12, s75"); e("v_mov_b32 v13, s76")
            e("s_mov_b64 s[56:57], exec"); e("s_mov_b64 exec, 1")
            e("global_store_dword v13, v12, s[34:35] sc0 sc1")
            e("s_mov_b64 exec, s[56:57]")
            a.label("LC_noxid")
        extra = []
        if g + D < len(Gs): extra.append(("A", g + D))
        if s == 0 and 1 <= m <= 4: extra.append(("B", k, 1, m-1))
        if s == 1 and k + 1 < NK and m >= 5:
            for n in {5: [0, 1], 6: [2], 7: [3]}[m]: extra.append(("B", k+1, 0, n))
        if s == 1 and m == 8 - D and k + 1 < NK:
            T.drain()
            if opt.get("kst") and k > 0: e(f"v_writelane_b32 v62, s60, {k-1}")
            e("s_barrier")
            if opt.get("kst"): e("s_memtime s[60:61]")
        order = range(4) if (m % 2 == 0) else range(3, -1, -1)
        for ii, n in enumerate(order):
            T.need([fa(g), fb(p,n)])
            d = acc(m, n)
            e(f"v_mfma_f32_16x16x32_bf16 {vr(d,4)}, {vr(fa(g),4)}, {vr(fb(p,n),4)}, {vr(d,4)}")
            if ii < len(extra):
                x = extra[ii]
                T.read(*(rdA(x[1]) if x[0] == "A" else rdB(x[1], x[2], x[3])))
    stamp(2)
    if opt.get("kst"):
        e("s_waitcnt lgkmcnt(0)"); e("v_writelane_b32 v62, s60, 14")
        e("s_lshl_b32 s41, s2, 2"); e("s_add_u32 s41, s41, s3"); e("s_lshl_b32 s41, s41, 8"); e("s_add_u32 s41, s41, 0x4400000")
        e("s_mov_b32 s44, s34"); e("s_mov_b32 s45, s35"); e("s_mov_b32 s46, 0x8000000"); e("s_mov_b32 s47, 0x00020000")
        e("v_lshlrev_b32 v63, 2, v2"); e("buffer_store_dword v62, v63, s[44:47], s41 offen")
    if stamps:
        e("s_waitcnt lgkmcnt(0)"); e("s_mov_b32 s99, s100"); e("s_memtime s[100:101]"); e("s_waitcnt lgkmcnt(0)"); e("s_sub_u32 s99, s100, s99")
    e("s_mov_b32 s44, s34"); e("s_mov_b32 s45, s35"); e(f"s_mov_b32 s46, {WS_USED}"); e("s_mov_b32 s47, 0x00020000")
    e("s_nop 7")
    PKB_RE = "op_sel:[0,0,0] op_sel_hi:[0,1,1]"
    PKB_IM = "op_sel:[1,0,0] op_sel_hi:[1,1,1]"
    NEG0 = "neg_lo:[1,0,0] neg_hi:[1,0,0]"
    def U(i, aa, part): return acc(i >> 1, part*2 + aa) + 2*(i & 1)
    def step4(aa, dre, dim, pre, pim, ure, uim):
        L = vr(P(aa), 2)
        return [f"v_pk_fma_f32 {vr(dre,2)}, {L}, {vr(pre,2)}, {vr(ure,2)} {PKB_RE}",
                f"v_pk_fma_f32 {vr(dim,2)}, {L}, {vr(pim,2)}, {vr(uim,2)} {PKB_RE}",
                f"v_pk_fma_f32 {vr(dre,2)}, {L}, {vr(pim,2)}, {vr(dre,2)} {PKB_IM} {NEG0}",
                f"v_pk_fma_f32 {vr(dim,2)}, {L}, {vr(pre,2)}, {vr(dim,2)} {PKB_IM}"]
    def interleave(l0, l1):
        for x, y in zip(l0, l1): e(x); e(y)
    cur = [(U(0,aa,0), U(0,aa,1)) for aa in range(2)]
    for i in range(1, 16):
        nx = [(112 + aa*8 + (i & 1)*4, 114 + aa*8 + (i & 1)*4) for aa in range(2)]
        interleave(*[step4(aa, nx[aa][0], nx[aa][1], cur[aa][0], cur[aa][1], U(i,aa,0), U(i,aa,1)) for aa in range(2)])
        cur = nx
    def cmul_add(dre, dim, are, aim, bre, bim, cre, cim):
        e(f"v_fma_f32 v{dre}, v{are}, v{bre}, {cre}"); e(f"v_fma_f32 v{dim}, v{are}, v{bim}, {cim}")
        e(f"v_fma_f32 v{dre}, -v{aim}, v{bim}, v{dre}"); e(f"v_fma_f32 v{dim}, v{aim}, v{bre}, v{dim}")
    for aa in range(2):
        sre, sim = cur[aa]
        cmul_add(28+2*aa, 29+2*aa, P(aa)+4, P(aa)+5, sre, sim, f"v{sre+1}", f"v{sim+1}")
    e("v_mul_u32_u24 v5, 80, v9"); e("s_lshl_b32 s22, s20, 5"); e(f"s_add_u32 s22, s22, {K1_SEG}")
    e("v_lshl_add_u32 v6, v4, 3, v5"); e("v_add_u32 v6, s22, v6")
    e("ds_write_b64 v6, v[28:29]"); e(f"ds_write_b64 v6, v[30:31] offset:{16*80}")
    guard_init()
    a.label("LC_nn")
    guard()
    e("s_waitcnt vmcnt(0)")
    e("v_cmp_eq_u32 vcc, 0, v15"); e("s_nop 4"); e("s_cbranch_vccz LC_nn2")
    e("s_sleep 2"); e("global_load_dword v15, v14, s[32:33] sc0 sc1"); e("s_branch LC_nn")
    a.label("LC_nn2")
    e(f"v_mov_b32 v7, {K1_NONCE}"); e("ds_write_b32 v7, v15")
    e("s_waitcnt lgkmcnt(0)")
    e("s_barrier")
    e(f"v_add_u32 v5, {K1_SEG}, v5")
    SG = lambda aa, s: 64 + 16*aa + 2*s
    for aa in range(2):
        for q in range(4):
            e(f"ds_read_b128 {vr(64+16*aa+4*q,4)}, v5 offset:{aa*16*80 + 16*q}")
    def cfma(d, L, x, s):
        e(f"v_pk_fma_f32 {vr(d,2)}, {vr(L,2)}, {vr(x,2)}, {vr(s,2)} op_sel:[0,0,0] op_sel_hi:[0,1,1]")
        e(f"v_pk_fma_f32 {vr(d,2)}, {vr(L,2)}, {vr(x,2)}, {vr(d,2)} op_sel:[1,1,0] op_sel_hi:[1,0,1] neg_lo:[1,0,0]")
    e("s_waitcnt lgkmcnt(0)")
    X = [SG(0,0), SG(1,0)]
    for s in range(1, 8):
        for aa in range(2):
            d = 96 + 4*aa + 2*(s & 1)
            cfma(d, P(aa)+6, X[aa], SG(aa, s)); X[aa] = d
    assert X == [98, 102]
    e("v_and_b32 v7, 1, v4"); e("v_cmp_ne_u32 vcc, 0, v7"); e("s_nop 1")
    e("v_cndmask_b32 v104, v98, v102, vcc"); e("v_cndmask_b32 v106, v99, v103, vcc")
    e(f"v_cndmask_b32 v32, v{P(0)+8}, v{P(1)+8}, vcc"); e(f"v_cndmask_b32 v33, v{P(0)+9}, v{P(1)+9}, vcc")
    e("v_mov_b32 v105, v15"); e("v_mov_b32 v107, v15")
    e("s_lshl_b32 s22, s14, 3"); e("s_add_u32 s22, s22, s13"); e("s_lshl_b32 s22, s22, 10"); e(f"s_add_u32 s22, s22, {WS_AGG}")
    e("v_and_b32 v11, 31, v2"); e("s_lshl_b32 s23, s21, 5"); e("v_add_u32 v11, s23, v11"); e("v_lshlrev_b32 v11, 4, v11")
    e("s_cmp_lg_u32 s20, 0"); e("s_cbranch_scc1 LC_nopub")
    e("s_mov_b64 s[56:57], exec"); e("s_mov_b32 exec_hi, 0")
    e("buffer_store_dwordx4 v[104:107], v11, s[44:47], s22 offen sc0 sc1")
    e("s_mov_b64 exec, s[56:57]")
    a.label("LC_nopub")
    e("s_lshl_b32 s23, s14, 13"); e(f"s_add_u32 s23, s23, {WS_AGG}")
    GRL = [16, 20, 24, 28, 36, 108, 112]
    def poll_loads(tag):
        for cp in range(7):
            e(f"s_cmp_le_u32 s13, {cp}"); e(f"s_cbranch_scc1 LC_pl{tag}")
            e(f"s_add_u32 s24, s23, {cp*1024}")
            e(f"buffer_load_dwordx4 {vr(GRL[cp],4)}, v11, s[44:47], s24 offen sc0 sc1")
        a.label(f"LC_pl{tag}")
    poll_loads("a")
    e("s_lshl_b32 s25, s16, 7"); e(f"s_add_u32 s25, s25, {WS_XID}")
    e("v_and_b32 v35, 31, v2"); e("v_lshlrev_b32 v35, 2, v35")
    e("buffer_load_dword v34, v35, s[44:47], s25 offen sc0 sc1")
    for i in range(16):
        ops = []
        for aa in range(2):
            r0, r1 = U(i,aa,0), U(i,aa,1); t = 120 + 2*aa; C = vr(P(aa)+2, 2)
            ops.append([f"v_pk_mul_f32 {vr(t,2)}, {C}, {vr(r0,2)} op_sel:[0,0] op_sel_hi:[0,1]",
                        f"v_pk_mul_f32 {vr(r0,2)}, {C}, {vr(r0,2)} op_sel:[1,0] op_sel_hi:[1,1]",
                        f"v_pk_fma_f32 {vr(r0,2)}, {C}, {vr(r1,2)}, {vr(r0,2)} {PKB_RE}",
                        f"v_pk_fma_f32 {vr(r1,2)}, {C}, {vr(r1,2)}, {vr(t,2)} {PKB_IM} {NEG0}"])
        interleave(*ops)
    guard_init()
    a.label("LC_poll")
    guard()
    e("s_waitcnt vmcnt(0)")
    e("s_mov_b64 s[56:57], 0")
    for cp in range(7):
        e(f"s_cmp_le_u32 s13, {cp}"); e("s_cbranch_scc1 LC_chk")
        e(f"v_cmp_ne_u32 vcc, v{GRL[cp]+1}, v15"); e("s_or_b64 s[56:57], s[56:57], vcc")
        e(f"v_cmp_ne_u32 vcc, v{GRL[cp]+3}, v15"); e("s_or_b64 s[56:57], s[56:57], vcc")
    a.label("LC_chk")
    e("s_cmp_eq_u64 s[56:57], 0"); e("s_cbranch_scc1 LC_got")
    e("s_sleep 1")
    poll_loads("b")
    e("s_branch LC_poll")
    a.label("LC_got")
    stamp(3)
    e("s_barrier")
    e("v_mov_b32 v96, 0"); e("v_mov_b32 v97, 0")
    for cp in range(7):
        e(f"s_cmp_le_u32 s13, {cp}"); e("s_cbranch_scc1 LC_hin")
        e(f"v_mov_b32 v{GRL[cp]+1}, v{GRL[cp]+2}")
        cfma(98, 32, 96, GRL[cp])
        e("v_mov_b32 v96, v98"); e("v_mov_b32 v97, v99")
    a.label("LC_hin")
    e("v_and_b32 v5, 47, v2"); e("v_lshlrev_b32 v5, 2, v5"); e("v_or_b32 v6, 64, v5")
    e("ds_bpermute_b32 v100, v5, v96"); e("ds_bpermute_b32 v101, v5, v97")
    e("ds_bpermute_b32 v102, v6, v96"); e("ds_bpermute_b32 v103, v6, v97")
    e("v_readfirstlane_b32 s74, v15")
    e("s_and_b32 s75, s74, 0xfffffff0"); e("s_or_b32 s75, s75, s73"); e("s_or_b32 s75, s75, 8")
    e("v_cmp_ne_u32 vcc, s75, v34"); e("s_nop 1")
    e("s_mov_b64 s[78:79], vcc")
    e("s_waitcnt lgkmcnt(0)")
    for g_ in range(4):
        lo = (0xFFFF << (16*g_)) & 0xFFFFFFFF; hi = (0xFFFF << (16*g_)) >> 32
        e(f"s_mov_b32 s{60+2*g_}, 0x{lo:x}"); e(f"s_mov_b32 s{61+2*g_}, 0x{hi:x}")
    def prefix(wm):
        Pc = [100, 102]
        for s in range(4*wm + 4):
            if s >= 4*wm:
                g_ = s - 4*wm
                for aa in range(2):
                    if g_ == 0:
                        e(f"v_mov_b32 v{104+2*aa}, v{Pc[aa]}"); e(f"v_mov_b32 v{105+2*aa}, v{Pc[aa]+1}")
                    else:
                        e(f"v_cndmask_b32 v{104+2*aa}, v{104+2*aa}, v{Pc[aa]}, s[{60+2*g_}:{61+2*g_}]")
                        e(f"v_cndmask_b32 v{105+2*aa}, v{105+2*aa}, v{Pc[aa]+1}, s[{60+2*g_}:{61+2*g_}]")
            if s < 4*wm + 3:
                for aa in range(2):
                    d = 108 + 4*aa + 2*(s & 1)
                    cfma(d, P(aa)+6, Pc[aa], SG(aa, s)); Pc[aa] = d
    e("s_cmp_eq_u32 s20, 0"); e("s_cbranch_scc0 LC_wm1")
    prefix(0); e("s_branch LC_wmj")
    a.label("LC_wm1"); prefix(1)
    a.label("LC_wmj")
    for aa in range(2):
        sre, sim = cur[aa]; h = 104 + 2*aa; p = P(aa)
        cmul_add(24, 25, p+4, p+5, h, h+1, f"v{sre}", f"v{sim}")
        cmul_add(16+4*aa, 18+4*aa, p+2, p+3, h, h+1, "0", "0")
        cmul_add(17+4*aa, 19+4*aa, p+2, p+3, 24, 25, "0", "0")
    e("s_lshl_b32 s22, s13, 1"); e("s_add_u32 s22, s22, s20"); e("s_lshl_b32 s22, s22, 6")
    e("s_lshl_b32 s23, s70, 5"); e("s_add_u32 s22, s22, s23")
    e("s_and_b32 s23, s14, 15"); e("s_add_u32 s22, s22, s23"); e("s_lshl_b32 s22, s22, 14")
    if HB: e(f"s_add_u32 s22, s22, {HB}")
    e("s_add_u32 s23, s22, 262144")
    e("v_lshlrev_b32 v5, 12, v4"); e("v_lshl_add_u32 v5, v9, 4, v5")
    hflags = opt.get("hflags", "")
    prev = [(16, 18), (20, 22)]
    for i in range(16):
        interleave(*[step4(aa, U(i,aa,1), U(i,aa,0), prev[aa][0], prev[aa][1], U(i,aa,1), U(i,aa,0)) for aa in range(2)])
        prev = [(U(i,aa,1), U(i,aa,0)) for aa in range(2)]
        if (i & 7) == 7:
            h = i >> 3
            idx = 0
            for part in range(2):
                for aa in range(2):
                    for sub in range(2):
                        d = 64 + 32*h + idx*4; idx += 1
                        neg = "-" if part else ""
                        for q in range(4):
                            src = acc(4*h + q, (1 - part)*2 + aa)
                            e(f"v_cvt_pk_bf16_f32 v{d+q}, {neg}v{src+sub}, {neg}v{src+2+sub}")
                        if not opt.get("nostore"): e(f"buffer_store_dwordx4 {vr(d,4)}, v5, s[44:47], s{23 if part else 22} offen offset:{aa*256 + (2*sub + h)*1024} {hflags}")
    e("s_waitcnt vmcnt(0)")
    if opt.get("forcewb"):
        e("s_mov_b64 s[78:79], -1")
    e("s_cmp_eq_u64 s[78:79], 0"); e("s_cbranch_scc1 LC_nowb")
    e("buffer_wbl2 sc1"); e("s_waitcnt vmcnt(0)")
    a.label("LC_nowb")
    e("s_lshl_b32 s24, s16, 2"); e("s_and_b32 s25, s13, 1"); e("s_lshl_b32 s25, s25, 1"); e("s_add_u32 s24, s24, s25"); e("s_add_u32 s24, s24, s20")
    e("s_lshl_b32 s24, s24, 7"); e("s_and_b32 s25, s14, 15"); e("s_lshl_b32 s25, s25, 1"); e("s_add_u32 s25, s25, s21"); e("s_lshl_b32 s25, s25, 2")
    e("s_add_u32 s24, s24, s25"); e(f"s_add_u32 s24, s24, {WS_HF}")
    e("v_mov_b32 v5, 0")
    e("s_mov_b64 s[56:57], exec"); e("s_mov_b64 exec, 1")
    e("buffer_store_dword v15, v5, s[44:47], s24 offen sc0 sc1")
    e("s_mov_b64 exec, s[56:57]")
    stamp(4)
    e("s_barrier")
    if opt.get("onepoll"): e("s_barrier")

    e("s_load_dwordx2 s[4:5], s[0:1], 0")
    e("s_load_dwordx2 s[36:37], s[0:1], 64")
    e("s_load_dwordx2 s[38:39], s[0:1], 136")
    e("s_load_dwordx2 s[40:41], s[0:1], 152")
    e("s_lshl_b32 s22, s72, 7"); e("s_lshl_b32 s23, s20, 6"); e("s_add_u32 s22, s22, s23")
    e("v_lshlrev_b32 v5, 2, v4"); e("v_add_u32 v5, s22, v5")
    e("s_lshl_b32 s22, s71, 7"); e("s_lshl_b32 s23, s21, 6"); e("s_add_u32 s22, s22, s23")
    e("s_lshl_b32 s23, s70, 5"); e("s_add_u32 s22, s22, s23")
    e("v_add_u32 v6, s22, v3")
    e("v_lshlrev_b32 v7, 1, v5")
    e("v_lshl_add_u32 v8, v6, 11, v7")
    e("v_lshlrev_b32 v9, 4, v6"); e(f"v_add_u32 v9, {WS_G}, v9")
    e("v_lshlrev_b32 v10, 2, v5"); e("v_lshl_add_u32 v10, v6, 12, v10")
    e("v_bfe_u32 v12, v2, 1, 3"); e("v_xor_b32 v12, v12, v4"); e("v_lshlrev_b32 v12, 4, v12"); e("v_lshl_add_u32 v12, v3, 7, v12")
    e("s_lshl_b32 s22, s20, 13"); e(f"s_add_u32 s22, s22, {K2_COFF}")
    for se in range(2):
        for s in range(2):
            e(f"v_xor_b32 v13, {64*s}, v12"); e(f"v_add_u32 v13, {se*2*K2_STAGE}, v13"); e(f"v_add_u32 v{16+se*2+s}, s22, v13")
    e("v_bfe_u32 v12, v2, 1, 1"); e(f"v_mul_u32_u24 v12, {K2_HP}, v12")
    e("v_bfe_u32 v13, v2, 2, 2"); e("v_lshl_add_u32 v13, v4, 3, v13"); e("v_lshl_add_u32 v12, v13, 4, v12")
    e("v_and_b32 v13, 1, v2"); e("v_lshl_add_u32 v12, v13, 3, v12")
    e(f"s_mul_i32 s22, s21, {8*K2_HP}")
    e("v_add_u32 v20, s22, v12"); e(f"v_add_u32 v21, {2*K2_STAGE}, v20")
    acc2 = lambda md, nt: 128 + (md*4 + nt)*4
    for r in range(128, 192): e(f"v_mov_b32 v{r}, 0")
    e("s_waitcnt lgkmcnt(0)")
    e("s_barrier")
    stamp(5)
    T = LdsTracker(a)
    fa2 = lambda p, m: 64 + p*32 + m*4
    fb2 = lambda p, n: 64 + p*32 + 16 + n*4
    def rd2(k, s):
        st = k % K2_NST; se = st // 2; off = (st % 2) * K2_STAGE; p = s & 1
        def B(n):
            return [(f"ds_read_b64_tr_b16 {vr(fb2(p,n),2)}, v{20+se} offset:{off + 2*K2_HP*n + 512*s}", (fb2(p,n), 0)),
                    (f"ds_read_b64_tr_b16 {vr(fb2(p,n)+2,2)}, v{20+se} offset:{off + 2*K2_HP*n + 512*s + 64}", (fb2(p,n), 1))]
        def A(m):
            return [(f"ds_read_b128 {vr(fa2(p,m),4)}, v{16+se*2+s} offset:{off + m*2048}", (fa2(p,m), 0))]
        return A(0) + B(0) + B(1) + B(2) + B(3) + A(1) + A(2) + A(3)
    for r in rd2(0, 0): T.read(*r)
    for k in range(NK2):
        for s in range(2):
            p = s & 1
            if s == 1:
                nxt = []
                if k + 1 < NK2:
                    T.drain()
                    if opt.get("kst") and k > 0: e(f"v_writelane_b32 v62, s60, {k-1}")
                    e("s_barrier"); nxt = rd2(k+1, 0)
                    if opt.get("kst"): e("s_memtime s[60:61]")
            else:
                nxt = rd2(k, 1)
            i = 0
            for m in range(4):
                order = range(4) if (m % 2 == 0) else range(3, -1, -1)
                for n in order:
                    T.need([(fa2(p,m),0), (fb2(p,n),0), (fb2(p,n),1)])
                    d = acc2(m, n)
                    e(f"v_mfma_f32_16x16x32_bf16 {vr(d,4)}, {vr(fa2(p,m),4)}, {vr(fb2(p,n),4)}, {vr(d,4)}")
                    if i < len(nxt): T.read(*nxt[i])
                    i += 1
    stamp(6)
    e("s_barrier")
    e("v_lshrrev_b32 v22, 1, v4"); e("s_lshl_b32 s22, s20, 3"); e("v_add_u32 v22, s22, v22")
    e("v_and_b32 v23, 1, v4"); e("v_lshlrev_b32 v23, 3, v23"); e("v_lshl_add_u32 v23, v3, 8, v23"); e("s_lshl_b32 s22, s21, 13"); e("v_add_u32 v23, s22, v23")
    for md in range(4):
        e(f"v_add_u32 v24, {2*md}, v22"); e("v_xor_b32 v24, v24, v3"); e("v_lshl_add_u32 v24, v24, 4, v23")
        for nt in range(2):
            e(f"ds_read_b64 {vr(192+(nt*4+md)*2,2)}, v24 offset:{nt*4096}")
    e("s_lshl_b32 s22, s20, 7"); e("v_lshlrev_b32 v24, 3, v4"); e("v_add_u32 v24, s22, v24")
    for md in range(4):
        e(f"ds_read_b64 {vr(208+2*md,2)}, v24 offset:{16384 + 32*md}"); e(f"ds_read_b64 {vr(216+2*md,2)}, v24 offset:{16640 + 32*md}")
    e("s_lshl_b32 s22, s21, 9"); e("v_lshlrev_b32 v25, 4, v3"); e("v_add_u32 v25, s22, v25")
    e("ds_read_b128 v[224:227], v25 offset:16896"); e("ds_read_b128 v[228:231], v25 offset:17152")
    if opt.get("kst"):
        e("s_waitcnt lgkmcnt(0)"); e("v_writelane_b32 v62, s60, 30")
        e("s_lshl_b32 s26, s2, 2"); e("s_add_u32 s26, s26, s3"); e("s_lshl_b32 s26, s26, 8"); e("s_add_u32 s26, s26, 0x4500000")
        e("s_mov_b32 s46, 0x8000000")
        e("v_lshlrev_b32 v63, 2, v2"); e("buffer_store_dword v62, v63, s[44:47], s26 offen")
        e(f"s_mov_b32 s46, {WS_USED}")
    e("s_lshl_b32 s22, s2, 2"); e("s_add_u32 s22, s22, s3"); e("s_lshl_b32 s22, s22, 13"); e(f"s_add_u32 s22, s22, {WS_XCH}")
    e("s_xor_b32 s23, s2, 1"); e("s_lshl_b32 s23, s23, 2"); e("s_add_u32 s23, s23, s3")
    e("s_lshl_b32 s24, s23, 7"); e(f"s_add_u32 s24, s24, {WS_FLG}")
    e("s_lshl_b32 s23, s23, 13"); e(f"s_add_u32 s23, s23, {WS_XCH}")
    e("s_lshl_b32 s25, s2, 2"); e("s_add_u32 s25, s25, s3"); e("s_lshl_b32 s25, s25, 7"); e(f"s_add_u32 s25, s25, {WS_FLG}")
    e("v_lshlrev_b32 v12, 4, v2"); e("v_add_u32 v13, 4096, v12")
    e("s_cmp_eq_u32 s70, 0"); e("s_cbranch_scc1 LT_sendA")
    def send(nt0):
        for idx in range(8):
            md, nt = idx >> 1, nt0 + (idx & 1)
            e(f"buffer_store_dwordx4 {vr(acc2(md,nt),4)}, v{13 if idx >= 4 else 12}, s[44:47], s22 offen offset:{(idx & 3)*1024} sc0 sc1")
    def keep(nt0):
        for idx in range(8):
            md, nt = idx >> 1, nt0 + (idx & 1)
            for r in range(4): e(f"v_mov_b32 v{96+idx*4+r}, v{acc2(md,nt)+r}")
    e("s_nop 3")
    send(0); keep(2); e("s_branch LT_sent")
    a.label("LT_sendA")
    e("s_nop 3")
    send(2); keep(0)
    a.label("LT_sent")
    e("s_waitcnt vmcnt(0) lgkmcnt(0)")
    e("v_mov_b32 v30, 0")
    e("s_mov_b64 s[56:57], exec"); e("s_mov_b64 exec, 1")
    e("buffer_store_dword v15, v30, s[44:47], s25 offen sc0 sc1")
    e("s_mov_b64 exec, s[56:57]")
    guard_init()
    a.label("LT_g")
    guard()
    e("v_cmp_ne_u32 vcc, v225, v15"); e("s_mov_b64 s[56:57], vcc")
    e("v_cmp_ne_u32 vcc, v227, v15"); e("s_or_b64 s[56:57], s[56:57], vcc")
    e("v_cmp_ne_u32 vcc, v229, v15"); e("s_or_b64 s[56:57], s[56:57], vcc")
    e("v_cmp_ne_u32 vcc, v231, v15"); e("s_or_b64 s[56:57], s[56:57], vcc")
    e("s_cmp_eq_u64 s[56:57], 0"); e("s_cbranch_scc1 LT_gok")
    e("s_sleep 1")
    e(f"global_load_dwordx4 v[224:227], v9, s[34:35] sc0 sc1"); e(f"global_load_dwordx4 v[228:231], v9, s[34:35] offset:256 sc0 sc1")
    e("s_waitcnt vmcnt(0)"); e("s_branch LT_g")
    a.label("LT_gok")
    e("buffer_load_dword v31, v30, s[44:47], s24 offen sc0 sc1")
    for md in range(4):
        for h in range(2):
            e(f"v_lshlrev_b32 v{232+4*md+2*h}, 16, v{208+2*md+h}"); e(f"v_and_b32 v{233+4*md+2*h}, 0xffff0000, v{208+2*md+h}")
            e(f"v_lshlrev_b32 v{64+4*md+2*h}, 16, v{216+2*md+h}"); e(f"v_and_b32 v{65+4*md+2*h}, 0xffff0000, v{216+2*md+h}")
    for idx in range(8):
        md, nt = idx >> 1, idx & 1
        xr = 192 + (nt*4+md)*2; g = 224 + 4*nt; out = 32 + idx*4
        for h in range(2):
            e(f"v_lshlrev_b32 v22, 16, v{xr+h}"); e(f"v_and_b32 v23, 0xffff0000, v{xr+h}")
            e(f"v_pk_mul_f32 v[24:25], v[22:23], {vr(232+4*md+2*h,2)}")
            e(f"v_pk_mul_f32 v[26:27], v[22:23], {vr(64+4*md+2*h,2)}")
            e("v_cvt_pk_bf16_f32 v24, v24, v25"); e("v_cvt_pk_bf16_f32 v26, v26, v27")
            e("v_lshlrev_b32 v22, 16, v24"); e("v_and_b32 v23, 0xffff0000, v24")
            e("v_lshlrev_b32 v28, 16, v26"); e("v_and_b32 v29, 0xffff0000, v26")
            e(f"v_pk_mul_f32 {vr(out+2*h,2)}, {vr(g,2)}, v[22:23] op_sel:[0,0] op_sel_hi:[0,1]")
            e(f"v_pk_fma_f32 {vr(out+2*h,2)}, {vr(g+2,2)}, v[28:29], {vr(out+2*h,2)} op_sel:[0,0,0] op_sel_hi:[0,1,1]")
    e("s_cmp_eq_u32 s70, 0"); e("s_cselect_b64 s[56:57], 0, -1")
    for nt in range(2):
        e(f"v_cndmask_b32 v{248+2*nt}, v{224+4*nt}, v{226+4*nt}, s[56:57]")
        e(f"v_cndmask_b32 v{249+2*nt}, v{226+4*nt}, v{224+4*nt}, s[56:57]")
    for idx in range(8):
        nt = idx & 1
        for h in range(2):
            e(f"v_pk_fma_f32 {vr(32+idx*4+2*h,2)}, {vr(248+2*nt,2)}, {vr(96+idx*4+2*h,2)}, {vr(32+idx*4+2*h,2)} op_sel:[0,0,0] op_sel_hi:[0,1,1]")
    guard_init()
    a.label("LT_poll")
    guard()
    e("s_waitcnt vmcnt(0)")
    e("v_cmp_ne_u32 vcc, v31, v15"); e("s_nop 4"); e("s_cbranch_vccz LT_got")
    e("s_sleep 1")
    e("buffer_load_dword v31, v30, s[44:47], s24 offen sc0 sc1")
    e("s_branch LT_poll")
    a.label("LT_got")
    stamp(7)
    for idx in range(8):
        e(f"buffer_load_dwordx4 {vr(64+idx*4,4)}, v{13 if idx >= 4 else 12}, s[44:47], s23 offen offset:{(idx & 3)*1024} sc0 sc1")
    e("v_add_u32 v11, 0x10000, v10")
    oflags = opt.get("oflags", "")
    for idx in range(8):
        md, nt = idx >> 1, idx & 1
        e(f"s_waitcnt vmcnt(7)")
        for h in range(2):
            e(f"v_pk_fma_f32 {vr(32+idx*4+2*h,2)}, {vr(248+2*nt,2)}, {vr(64+idx*4+2*h,2)}, {vr(32+idx*4+2*h,2)} op_sel:[1,0,0] op_sel_hi:[1,1,1]")
        e(f"global_store_dwordx4 v{11 if nt else 10}, {vr(32+idx*4,4)}, s[40:41] offset:{md*64} {oflags}")
    if stamps:
        e("s_waitcnt vmcnt(0)")
        e("s_memrealtime s[96:97]"); e("s_waitcnt lgkmcnt(0)")
        e("s_lshl_b32 s41, s2, 2"); e("s_add_u32 s41, s41, s3"); e("s_lshl_b32 s41, s41, 6"); e("s_add_u32 s41, s41, 0x4000000")
        e("s_mov_b32 s46, 0x8000000")
        e("v_mov_b32 v3, 0")
        for i in range(9):
            e(f"v_mov_b32 v4, s{80+2*i}"); e(f"buffer_store_dword v4, v3, s[44:47], s41 offen offset:{4*i}")
        e("v_mov_b32 v4, s78"); e(f"buffer_store_dword v4, v3, s[44:47], s41 offen offset:36")
        e("v_mov_b32 v4, s99"); e(f"buffer_store_dword v4, v3, s[44:47], s41 offen offset:40")
        e("v_mov_b32 v4, s73"); e(f"buffer_store_dword v4, v3, s[44:47], s41 offen offset:44")
    a.label("L_end")
    e("s_endpgm")

def build(fname, opt):
    a = Asm()
    gen(a, opt)
    txt = a.text()
    if opt.get("scope", "sc0 sc1") != "sc0 sc1":
        txt = txt.replace("sc0 sc1", opt["scope"])
    open(fname, "w").write(file_text([(None, (256,1,1), (512,1,1), LDS_SIZE)], txt, [kernel_desc(NAME + "_kernel", 256, 102)]))

if __name__ == "__main__":
    B = dict(stamps=True, scope="sc1", earlyC=0, delaypoll=32, tlb=0, gk=None, cpf="spread", kst=1)
    build("fz_st.s", dict(B))
    build("fz_t6_st.s", dict(B, tlb=6))
    build("fz_t6x31_st.s", dict(B, tlb=6, xk=31))
    build("fz_t8x30_st.s", dict(B, tlb=8, xk=30))
    build("fu.s", dict(scope="sc1", earlyC=0, delaypoll=32, tlb=6, gk=None, cpf="spread"))
```

```python
import sys
from asmlib import *

def vr(a, n): return f"v[{a}:{a+n-1}]"

WS_H    = 0
WS_G    = 16 << 20
WS_AGG  = WS_G + (64 << 10)
WS_FLG  = WS_AGG + (256 << 10)
WS_HF   = WS_FLG + (128 << 10)
WS_XID  = WS_HF + (8 << 10)
WS_XCH  = 17 << 20
WS_USED = 25 << 20

K1_STAGE = 49152
K1_SEG   = 3 * K1_STAGE
K2_HP    = 1088
K2_COFF  = 16 * K2_HP
K2_STAGE = K2_COFF + 128 * 128
K2_NST   = 4
K1_NONCE = K1_SEG + 5120
LDS_SIZE = K1_NONCE + 64

class LdsTracker:
    def __init__(self, a): self.a = a; self.q = []
    def read(self, text, dst): self.a.emit(text); self.q.append(dst)
    def need(self, regs):
        idx = -1
        for i, d in enumerate(self.q):
            if d in regs: idx = i
        if idx >= 0:
            n = len(self.q) - 1 - idx
            assert n <= 15
            self.a.emit(f"s_waitcnt lgkmcnt({n})"); self.q = self.q[idx+1:]
    def drain(self):
        if self.q: self.a.emit("s_waitcnt lgkmcnt(0)"); self.q = []

def gen(a, opt):
    e = a.emit
    stamps = opt.get("stamps", False)
    rot = opt.get("rot", 1)
    NK = 16; NK2 = 32; PD = K2_NST - 1
    HB = opt.get("hbase", 0)
    WS_USED = (HB + (16 << 20)) if HB else globals()["WS_USED"]
    def stamp(i):
        if stamps or opt.get("dbgspan"): e(f"s_memrealtime s[{80+2*i}:{81+2*i}]")
    LIMIT = opt.get("spin_limit", 1 << 18)
    def guard_init(): e("s_mov_b32 s98, 0")
    def guard(): e("s_add_u32 s98, s98, 1"); e(f"s_cmp_gt_u32 s98, {LIMIT}"); e("s_cbranch_scc1 L_end")
    kernel_begin(a, NAME + "_kernel")
    e("s_cmp_ge_u32 s2, 256")
    e("s_cbranch_scc1 L_end")
    stamp(0)
    e("s_load_dwordx2 s[4:5], s[0:1], 0")
    e("s_load_dwordx4 s[24:27], s[0:1], 24")
    e("s_load_dwordx4 s[28:31], s[0:1], 96")
    e("s_load_dwordx4 s[32:35], s[0:1], 160")
    e("v_lshrrev_b32 v1, 6, v0")
    e("v_and_b32 v2, 63, v0")
    e("s_and_b32 s16, s2, 7")
    e("v_readfirstlane_b32 s3, v1")
    e("s_lshr_b32 s17, s2, 3")
    e("s_and_b32 s70, s16, 1")
    e("s_lshr_b32 s18, s16, 1")
    e("s_lshl_b32 s13, s18, 1"); e("s_and_b32 s20, s17, 1"); e("s_add_u32 s13, s13, s20")
    e("s_lshr_b32 s14, s17, 1"); e("s_lshl_b32 s20, s70, 4"); e("s_add_u32 s14, s14, s20")
    e("s_lshl_b32 s71, s18, 2"); e("s_and_b32 s20, s17, 3"); e("s_add_u32 s71, s71, s20")
    e("s_lshr_b32 s72, s17, 2")
    e("s_and_b32 s19, s3, 3")
    if rot:
        e("s_lshl_b32 s15, s18, 9"); e("s_lshl_b32 s20, s70, 10"); e("s_add_u32 s15, s15, s20")
    else:
        e("s_mov_b32 s15, 0")
    e("s_cmp_ge_u32 s3, 4")
    e("s_cbranch_scc0 L_compute")

    e("s_load_dwordx2 s[36:37], s[0:1], 144")
    e("s_load_dwordx4 s[60:63], s[0:1], 40")
    e("s_load_dwordx4 s[64:67], s[0:1], 112")
    e("v_lshrrev_b32 v3, 3, v2")
    e("v_and_b32 v4, 7, v2")
    e("v_lshrrev_b32 v5, 1, v3"); e("v_xor_b32 v5, v5, v4"); e("v_lshlrev_b32 v5, 4, v5")
    e("v_xor_b32 v6, 64, v5")
    e("v_lshrrev_b32 v7, 2, v3"); e("v_lshlrev_b32 v7, 5, v7")
    e("v_and_b32 v8, 1, v3"); e("v_lshlrev_b32 v8, 4, v8"); e("v_add_u32 v7, v7, v8")
    e("v_bfe_u32 v8, v3, 1, 1"); e("v_add_u32 v7, v7, v8")
    e("s_lshl_b32 s20, s13, 8")
    e("s_lshr_b32 s21, s19, 1"); e("s_lshl_b32 s21, s21, 7"); e("s_add_u32 s20, s20, s21")
    e("s_and_b32 s21, s19, 1"); e("s_lshl_b32 s21, s21, 3"); e("s_add_u32 s20, s20, s21")
    e("v_add_u32 v7, s20, v7"); e("v_lshlrev_b32 v7, 11, v7")
    for q in range(8):
        qo = 64*(q & 1) + 2*(q >> 1)
        e(f"v_add_u32 v{40+q}, {qo*2048}, v7"); e(f"v_add_u32 v{40+q}, v{40+q}, v{6 if q&1 else 5}")
    e("s_and_b32 s20, s14, 15"); e("s_lshl_b32 s20, s20, 6")
    e("s_lshr_b32 s21, s19, 1"); e("s_lshl_b32 s21, s21, 5"); e("s_add_u32 s20, s20, s21")
    e("v_add_u32 v7, s20, v3"); e("v_lshlrev_b32 v7, 11, v7")
    for q in range(4):
        e(f"v_add_u32 v{48+q}, {q*8*2048}, v7"); e(f"v_add_u32 v{48+q}, v{48+q}, v{6 if q&1 else 5}")
    e("s_lshl_b32 s22, s19, 13")
    e("s_lshl_b32 s23, s19, 12"); e("s_add_u32 s23, s23, 32768")
    e("s_waitcnt lgkmcnt(0)")
    e("s_mov_b32 s6, 0x400000"); e("s_mov_b32 s7, 0x00020000")
    e("s_cmp_eq_u32 s70, 0")
    e("s_cselect_b32 s24, s24, s28"); e("s_cselect_b32 s25, s25, s29")
    e("s_cselect_b32 s26, s26, s30"); e("s_cselect_b32 s27, s27, s31")
    e("s_bitcmp1_b32 s19, 0")
    e("s_cselect_b32 s8, s26, s24"); e("s_cselect_b32 s9, s27, s25")
    e("s_mov_b32 s10, 0x200000"); e("s_mov_b32 s11, 0x00020000")
    def dma1(k):
        st = k % 3
        e(f"s_add_u32 s12, s15, {k*128}"); e("s_and_b32 s12, s12, 2047")
        for q in range(8):
            e(f"s_add_u32 m0, s22, {st*K1_STAGE + q*1024}"); e("s_nop 0")
            e(f"buffer_load_dwordx4 v{40+q}, s[4:7], s12 offen lds")
        for q in range(4):
            e(f"s_add_u32 m0, s23, {st*K1_STAGE + q*1024}"); e("s_nop 0")
            e(f"buffer_load_dwordx4 v{48+q}, s[8:11], s12 offen lds")
    dma1(0); dma1(1)
    e("s_mov_b32 s38, 2048"); e("s_mov_b32 s39, 0x00020000")
    e("s_mov_b32 s44, s34"); e("s_mov_b32 s45, s35"); e(f"s_mov_b32 s46, {WS_USED}"); e("s_mov_b32 s47, 0x00020000")
    e("v_lshlrev_b32 v52, 5, v2")
    e("v_lshlrev_b32 v53, 7, v2")
    e("s_lshl_b32 s40, s2, 3"); e("s_lshl_b32 s41, s19, 1"); e("s_add_u32 s40, s40, s41")
    e("s_lshl_b32 s41, s40, 11"); e("s_add_u32 s42, s41, 2048")
    e("s_lshr_b32 s68, s2, 6")
    e("s_mov_b32 s56, s60"); e("s_mov_b32 s57, s61")
    e("s_cmp_eq_u32 s68, 1"); e("s_cselect_b32 s56, s62, s56"); e("s_cselect_b32 s57, s63, s57")
    e("s_cmp_eq_u32 s68, 2"); e("s_cselect_b32 s56, s64, s56"); e("s_cselect_b32 s57, s65, s57")
    e("s_cmp_eq_u32 s68, 3"); e("s_cselect_b32 s56, s66, s56"); e("s_cselect_b32 s57, s67, s57")
    e("s_mov_b32 s58, 0x200000"); e("s_mov_b32 s59, 0x00020000")
    e("s_and_b32 s68, s2, 63"); e("s_lshl_b32 s68, s68, 2"); e("s_add_u32 s68, s68, s19"); e("s_lshl_b32 s68, s68, 13")
    cpf = opt.get("cpf", "vec")
    if cpf == "smem":
        e("s_add_u32 s56, s56, s68"); e("s_addc_u32 s57, s57, 0")
    GK = opt.get("gk", 9)
    def gate_loads():
        e("buffer_load_dwordx4 v[56:59], v52, s[4:7], s41 offen")
        e("buffer_load_dwordx4 v[60:63], v52, s[4:7], s41 offen offset:16")
        e("buffer_load_dwordx4 v[64:67], v52, s[4:7], s42 offen")
        e("buffer_load_dwordx4 v[68:71], v52, s[4:7], s42 offen offset:16")
        e("buffer_load_dwordx4 v[72:75], v52, s[36:39], 0 offen")
        e("buffer_load_dwordx4 v[76:79], v52, s[36:39], 0 offen offset:16")
        if cpf == "vec": e("buffer_load_dword v55, v53, s[56:59], s68 offen")
        return 7 if cpf == "vec" else 6
    if opt.get("tlbwarm", 1):
        e("s_add_u32 s30, s56, s68"); e("s_addc_u32 s31, s57, 0"); e("s_load_dword s69, s[30:31], 0")
        e("s_load_dword s69, s[36:37], 0")
        e("s_add_u32 s30, s4, s41"); e("s_addc_u32 s31, s5, 0"); e("s_load_dword s69, s[30:31], 0")
    vq1 = [0]*12 + [1]*12
    def v1wait(tag):
        idx = max(i for i, t in enumerate(vq1) if t == tag)
        e(f"s_waitcnt vmcnt({len(vq1) - 1 - idx})"); del vq1[:idx+1]
    v1wait(0)
    e("s_barrier")
    spread = opt.get("spread", 1)
    for k in range(NK):
        if k + 2 < NK: dma1(k + 2); vq1.extend([k + 2]*12)
        if cpf == "spread":
            ks = opt.get("spread_from", 0); n = 16 - ks
            per = (64 + n - 1) // n
            if k >= ks and (k - ks)*per < 64:
                cnt = min(per, 64 - (k - ks)*per)
                e(f"s_add_u32 s69, s68, {(k - ks)*per*128}")
                e(f"s_mov_b64 exec, {(1 << cnt) - 1}"); e("buffer_load_dword v55, v53, s[56:59], s69 offen"); e("s_mov_b64 exec, -1")
                vq1.append("t")
        if GK is not None and k == GK:
            vq1.extend(["g"]*gate_loads())
        if k + 1 < NK:
            v1wait(k + 1)
            e("s_barrier")
    e("s_barrier")
    stamp(1)
    e(f"v_mov_b32 v14, {K1_NONCE}"); e("ds_read_b32 v15, v14")
    e("s_barrier")
    if GK is None: gate_loads()
    e(f"s_waitcnt vmcnt({1 if (cpf == 'vec' and GK is None) else 0}) lgkmcnt(0)")
    for d in range(8):
        e(f"v_lshlrev_b32 v{80+2*d}, 16, v{72+d}"); e(f"v_and_b32 v{81+2*d}, 0xffff0000, v{72+d}")
    def gate_row(xr, idx):
        acc = 96
        e(f"v_mov_b32 v{acc}, 0")
        for d in range(8):
            e(f"v_lshlrev_b32 v97, 16, v{xr+d}"); e(f"v_and_b32 v98, 0xffff0000, v{xr+d}")
            e(f"v_mul_f32 v97, v97, v{80+2*d}"); e(f"v_mul_f32 v98, v98, v{81+2*d}")
            e(f"v_cvt_pk_bf16_f32 v99, v97, v98")
            e(f"v_lshlrev_b32 v97, 16, v99"); e(f"v_and_b32 v98, 0xffff0000, v99")
            e(f"v_add_f32 v{acc}, v{acc}, v97"); e(f"v_add_f32 v{acc}, v{acc}, v98")
        e("s_nop 1")
        for m in ("quad_perm:[1,0,3,2]", "quad_perm:[2,3,0,1]", "row_half_mirror", "row_mirror"):
            e(f"v_add_f32_dpp v{acc}, v{acc}, v{acc} {m} row_mask:0xf bank_mask:0xf"); e("s_nop 1")
        e(f"v_readlane_b32 s48, v{acc}, 0"); e(f"v_readlane_b32 s49, v{acc}, 16")
        e(f"v_readlane_b32 s50, v{acc}, 32"); e(f"v_readlane_b32 s51, v{acc}, 48")
        e("s_nop 1")
        e("v_mov_b32 v97, s48"); e("v_add_f32 v97, s49, v97"); e("v_mov_b32 v98, s50"); e("v_add_f32 v98, s51, v98")
        e("v_add_f32 v97, v97, v98")
        e("v_cvt_pk_bf16_f32 v97, v97, v97"); e("v_lshlrev_b32 v97, 16, v97")
        e("v_mul_f32 v97, 0xbfb8aa3b, v97"); e("v_exp_f32 v97, v97"); e("s_nop 0")
        e("v_add_f32 v97, 1.0, v97"); e("v_rcp_f32 v97, v97"); e("s_nop 0")
        e("v_cvt_pk_bf16_f32 v97, v97, v97"); e("v_lshlrev_b32 v100, 16, v97")
        e("v_sub_f32 v98, 1.0, v100"); e("v_cvt_pk_bf16_f32 v98, v98, v98"); e("v_lshlrev_b32 v102, 16, v98")
        e("v_mov_b32 v101, v15"); e("v_mov_b32 v103, v15")
        e(f"s_add_u32 s43, s40, {idx}"); e("s_lshl_b32 s43, s43, 4"); e(f"s_add_u32 s43, s43, {WS_G}")
        e("v_mov_b32 v97, 0")
        e("s_mov_b64 s[52:53], exec"); e("s_mov_b64 exec, 1")
        e("buffer_store_dwordx4 v[100:103], v97, s[44:47], s43 offen sc0 sc1")
        e("s_mov_b64 exec, s[52:53]")
    gate_row(56, 0); gate_row(64, 1)
    stamp(2)
    e("v_lshlrev_b32 v3, 4, v2")
    e("v_lshrrev_b32 v4, 3, v2")
    e("s_lshl_b32 s20, s72, 7"); e("s_lshl_b32 s21, s19, 5"); e("s_add_u32 s20, s20, s21")
    e("v_add_u32 v8, s20, v4"); e("v_lshlrev_b32 v8, 11, v8")
    for q in range(4):
        e(f"v_add_u32 v{40+q}, {q*8*2048}, v8"); e(f"v_add_u32 v{40+q}, v{40+q}, v{6 if q&1 else 5}")
    e("s_lshl_b32 s20, s71, 6"); e("s_lshl_b32 s21, s70, 5"); e("s_add_u32 s20, s20, s21"); e("s_lshl_b32 s20, s20, 14")
    e("s_lshl_b32 s21, s19, 12"); e("s_add_u32 s20, s20, s21")
    if HB: e(f"s_add_u32 s20, s20, {HB}")
    e(f"s_mul_i32 s22, s19, {4*K2_HP}")
    e("s_lshl_b32 s23, s19, 12"); e(f"s_add_u32 s23, s23, {K2_COFF}")
    e("s_cmp_eq_u32 s70, 0")
    e("s_cselect_b32 s8, s60, s64"); e("s_cselect_b32 s9, s61, s65"); e("s_mov_b32 s10, 0x200000"); e("s_mov_b32 s11, 0x00020000")
    e("s_cselect_b32 s36, s62, s66"); e("s_cselect_b32 s37, s63, s67"); e("s_mov_b32 s38, 0x200000"); e("s_mov_b32 s39, 0x00020000")
    e("s_load_dwordx2 s[60:61], s[0:1], 64"); e("s_load_dwordx2 s[64:65], s[0:1], 136")
    e("s_mov_b32 s62, 2048"); e("s_mov_b32 s63, 0x00020000"); e("s_mov_b32 s66, 2048"); e("s_mov_b32 s67, 0x00020000")
    e("v_lshlrev_b32 v48, 2, v2")
    e("s_lshl_b32 s28, s72, 8")
    e("v_lshrrev_b32 v49, 5, v2"); e("v_lshlrev_b32 v49, 6, v49"); e("v_and_b32 v50, 31, v2"); e("v_add_u32 v49, v49, v50"); e("v_lshlrev_b32 v49, 4, v49")
    e("s_lshl_b32 s29, s71, 7"); e("s_lshl_b32 s25, s70, 5"); e("s_add_u32 s29, s29, s25"); e("s_lshl_b32 s29, s29, 4"); e(f"s_add_u32 s29, s29, {WS_G}")
    e("s_waitcnt lgkmcnt(0)")
    def dma2H(k):
        st = k % K2_NST
        for q in range(4):
            e(f"s_add_u32 m0, s22, {st*K2_STAGE + q*K2_HP}")
            e(f"s_add_u32 s12, s20, {(0 if opt.get('fakeH') else k*16384) + q*1024}")
            e(f"buffer_load_dwordx4 v3, s[44:47], s12 offen lds")
    def dma2C(k):
        st = k % K2_NST
        srd = "s[8:11]" if (k < 16 or opt.get('fakeC')) else "s[36:39]"
        e(f"s_mov_b32 s12, {0 if opt.get('fakeC') else (k & 15)*128}")
        for q in range(4):
            e(f"s_add_u32 m0, s23, {st*K2_STAGE + q*1024}"); e("s_nop 0")
            e(f"buffer_load_dwordx4 v{40+q}, {srd}, s12 offen lds")
    e("v_lshrrev_b32 v10, 4, v2"); e("v_and_b32 v11, 15, v2")
    for q in range(4):
        e(f"v_add_u32 v12, {4*q}, v10"); e("v_xor_b32 v12, v12, v11"); e("v_lshlrev_b32 v12, 4, v12")
        e(f"v_lshl_add_u32 v{44+q}, v10, 11, v12")
    e("s_lshl_b32 s27, s71, 7"); e("s_lshr_b32 s25, s19, 1"); e("s_lshl_b32 s25, s25, 6"); e("s_add_u32 s27, s27, s25")
    e("s_lshl_b32 s25, s70, 5"); e("s_add_u32 s27, s27, s25"); e("s_and_b32 s25, s19, 1"); e("s_lshl_b32 s25, s25, 4"); e("s_add_u32 s27, s27, s25")
    e("s_lshl_b32 s27, s27, 11"); e("s_lshl_b32 s25, s72, 8"); e("s_add_u32 s27, s27, s25")
    e("s_lshl_b32 s26, s19, 12")
    if opt.get("tlbwarm2", 1):
        e("s_load_dword s69, s[60:61], 0"); e("s_load_dword s69, s[64:65], 0")
        e("s_add_u32 s30, s4, s27"); e("s_addc_u32 s31, s5, 0"); e("s_load_dword s69, s[30:31], 0")
    e("s_lshl_b32 s24, s16, 2"); e("s_and_b32 s25, s71, 3"); e("s_add_u32 s24, s24, s25"); e("s_lshl_b32 s24, s24, 7"); e(f"s_add_u32 s24, s24, {WS_HF}")
    e("v_and_b32 v9, 31, v2"); e("v_lshlrev_b32 v9, 2, v9")
    if opt.get("earlyC", 1):
        for k in range(PD): dma2C(k)
    e("s_barrier")
    if opt.get("delaypoll"):
        e(f"s_sleep {opt['delaypoll']}")
    if opt.get("onepoll"):
        e("s_cmp_lg_u32 s19, 0"); e("s_cbranch_scc1 LL_hg")
    guard_init()
    a.label("LL_hp")
    guard()
    e("buffer_load_dword v10, v9, s[44:47], s24 offen sc0 sc1")
    e("s_waitcnt vmcnt(0)")
    e("v_cmp_ne_u32 vcc, v10, v15"); e("s_nop 4"); e("s_cbranch_vccz LL_hg")
    e(f"s_sleep {opt.get('pollsleep', 1)}"); e("s_branch LL_hp")
    a.label("LL_hg")
    if opt.get("onepoll"): e("s_barrier")
    stamp(3)
    vq = []
    def vissue(tag, n): vq.extend([tag]*n)
    def vwait(tag):
        idx = max(i for i, t in enumerate(vq) if t == tag)
        n = len(vq) - 1 - idx
        e(f"s_waitcnt vmcnt({n})"); del vq[:idx+1]
    if opt.get("earlyC", 1):
        for k in range(PD): dma2H(k); vissue(k, 4)
    else:
        for k in range(PD): dma2H(k); dma2C(k); vissue(k, 8)
    vwait(0)
    stamp(4)
    e("s_barrier")
    tlb = opt.get("tlb", 1)
    for k in range(NK2):
        if k + PD < NK2:
            dma2H(k + PD); dma2C(k + PD); vissue(k + PD, 8)
        if tlb and k + tlb < NK2:
            e(f"s_add_u32 s12, s20, {(k + tlb)*16384}")
            e("s_mov_b64 exec, 1"); e("buffer_load_dword v54, v3, s[44:47], s12 offen"); e("s_mov_b64 exec, -1"); vissue("t", 1)
        if k == opt.get('xk', NK2 - PD):
            for q in range(4):
                e(f"s_add_u32 m0, s26, {q*1024}"); e(f"s_add_u32 s12, s27, {q*4*2048}")
                e(f"buffer_load_dwordx4 v{44+(q&3)}, s[4:7], s12 offen lds")
            e("s_cmp_eq_u32 s19, 0"); e(f"s_cbranch_scc0 LL_t1")
            e("s_mov_b32 m0, 16384"); e("s_nop 0"); e("buffer_load_dword v48, s[60:63], s28 offen lds"); e("s_branch LL_t3")
            a.label("LL_t1")
            e("s_cmp_eq_u32 s19, 1"); e(f"s_cbranch_scc0 LL_t2")
            e("s_mov_b32 m0, 16640"); e("s_nop 0"); e("buffer_load_dword v48, s[64:67], s28 offen lds"); e("s_branch LL_t3")
            a.label("LL_t2")
            e("s_mov_b32 m0, 16896"); e("s_nop 0"); e("buffer_load_dwordx4 v49, s[44:47], s29 offen sc0 sc1 lds")
            a.label("LL_t3")
            vissue("x", 5)
        if k + 1 < NK2:
            vwait(k + 1)
            e("s_barrier")
    vwait("x")
    e("s_barrier")
    if stamps:
        e("s_waitcnt lgkmcnt(0)")
        e("s_lshl_b32 s41, s2, 2"); e("s_add_u32 s41, s41, s19"); e("s_lshl_b32 s41, s41, 6"); e("s_add_u32 s41, s41, 0x4200000")
        e("s_mov_b32 s46, 0x8000000"); e("v_mov_b32 v3, 0")
        for i in range(5):
            e(f"v_mov_b32 v4, s{80+2*i}"); e(f"buffer_store_dword v4, v3, s[44:47], s41 offen offset:{4*i}")
    e("s_endpgm")

    a.label("L_compute")
    e("s_load_dwordx4 s[36:39], s[0:1], 8")
    e("s_load_dwordx2 s[40:41], s[0:1], 56")
    e("s_load_dwordx4 s[48:51], s[0:1], 80")
    e("s_load_dwordx2 s[52:53], s[0:1], 128")
    e("s_getreg_b32 s73, hwreg(HW_REG_XCC_ID, 0, 4)")
    e("v_and_b32 v3, 15, v2")
    e("v_lshrrev_b32 v4, 4, v2")
    e("s_and_b32 s21, s19, 1")
    e("s_lshr_b32 s20, s19, 1")
    e("s_lshl_b32 s22, s21, 5")
    e("v_add_u32 v9, s22, v3")
    e("s_and_b32 s22, s14, 15"); e("s_lshl_b32 s22, s22, 6")
    e("v_add_u32 v10, s22, v9"); e("v_lshlrev_b32 v10, 1, v10")
    e("s_waitcnt lgkmcnt(0)")
    e("s_cmp_eq_u32 s70, 0")
    e("s_cselect_b32 s36, s36, s48"); e("s_cselect_b32 s37, s37, s49")
    e("s_cselect_b32 s38, s38, s50"); e("s_cselect_b32 s39, s39, s51")
    e("s_cselect_b32 s40, s40, s52"); e("s_cselect_b32 s41, s41, s53")
    P = lambda aa: 40 + 12*aa
    for aa in range(2):
        e(f"global_load_ushort v{112+4*aa}, v10, s[36:37] offset:{32*aa}")
        e(f"global_load_ushort v{113+4*aa}, v10, s[38:39] offset:{32*aa}")
        e(f"global_load_ushort v{114+4*aa}, v10, s[40:41] offset:{32*aa}")
    e("s_or_b32 s58, s2, s3"); e("s_cmp_lg_u32 s58, 0"); e("s_cbranch_scc1 LC_nononce")
    e("s_memrealtime s[54:55]"); e("s_waitcnt lgkmcnt(0)")
    e("s_or_b32 s54, s54, 1")
    e(f"v_mov_b32 v12, s54"); e("v_mov_b32 v13, 0")
    e("s_mov_b64 s[56:57], exec"); e("s_mov_b64 exec, 1")
    e("global_store_dword v13, v12, s[32:33] sc0 sc1")
    e("s_mov_b64 exec, s[56:57]")
    a.label("LC_nononce")
    e("v_bfe_u32 v5, v2, 1, 3"); e("v_xor_b32 v6, v4, v5"); e("v_lshlrev_b32 v6, 4, v6"); e("v_lshl_add_u32 v6, v3, 7, v6")
    e("s_lshl_b32 s22, s20, 14")
    e("s_lshl_b32 s23, s21, 13"); e("s_add_u32 s23, s23, 32768")
    for st in range(3):
        for s in range(2):
            e(f"v_xor_b32 v5, {64*s}, v6"); e(f"v_add_u32 v5, {st*K1_STAGE}, v5")
            e(f"v_add_u32 v{16 + st*2 + s}, s22, v5"); e(f"v_add_u32 v{22 + st*2 + s}, s23, v5")
    for r in range(128, 256): e(f"v_mov_b32 v{r}, 0")
    e("s_waitcnt vmcnt(1)")
    e("s_or_b32 s58, s2, s3"); e("s_cmp_eq_u32 s58, 0"); e("s_cbranch_scc1 LC_pw"); e("s_waitcnt vmcnt(0)"); a.label("LC_pw")
    def csq(dre, dim, are, aim):
        e(f"v_mul_f32 v{dre}, v{are}, v{are}"); e(f"v_mul_f32 v{dim}, v{are}, v{aim}")
        e(f"v_fma_f32 v{dre}, -v{aim}, v{aim}, v{dre}"); e(f"v_add_f32 v{dim}, v{dim}, v{dim}")
    LOG2E = 0x3fb8aa3b; LOG2E_LO = 0x32a57060
    def exp_f32(dst, src, t1, t2):
        e(f"v_mul_f32 v{t1}, 0x{LOG2E:x}, v{src}"); e(f"s_mov_b32 s58, 0x{LOG2E:x}")
        e(f"v_fma_f32 v{t2}, v{src}, s58, -v{t1}"); e(f"s_mov_b32 s58, 0x{LOG2E_LO:x}")
        e(f"v_fma_f32 v{t2}, v{src}, s58, v{t2}"); e(f"v_exp_f32 v{t1}, v{t1}")
        e(f"v_mul_f32 v{t2}, 0x3f317218, v{t2}"); e(f"v_fma_f32 v{dst}, v{t1}, v{t2}, v{t1}")
    for aa in range(2):
        p = P(aa); lr, li, ld = 112+4*aa, 113+4*aa, 114+4*aa
        e(f"v_lshlrev_b32 v{lr}, 16, v{lr}"); e(f"v_lshlrev_b32 v{li}, 16, v{li}"); e(f"v_lshlrev_b32 v{ld}, 16, v{ld}")
        exp_f32(64, ld, 65, 66)
        e("v_cvt_pk_bf16_f32 v64, v64, v64"); e("v_lshlrev_b32 v64, 16, v64")
        e(f"v_mul_f32 v65, v64, v{lr}"); e(f"v_mul_f32 v66, v64, v{li}")
        exp_f32(67, 65, 68, 69)
        e("v_mul_f32 v66, 0.15915494, v66"); e("v_rndne_f32 v68, v66"); e("v_sub_f32 v66, v66, v68")
        e("v_cos_f32 v68, v66"); e("v_sin_f32 v69, v66"); e("s_nop 0")
        e(f"v_mul_f32 v{p}, v67, v68"); e(f"v_mul_f32 v{p+1}, v67, v69")
        e(f"v_add_f32 v70, -1.0, v{p}")
        e(f"v_mul_f32 v71, v{lr}, v{lr}"); e(f"v_fma_f32 v71, v{li}, v{li}, v71"); e("v_rcp_f32 v71, v71")
        e(f"v_mul_f32 v72, v70, v{lr}"); e(f"v_fma_f32 v72, v{p+1}, v{li}, v72")
        e(f"v_mul_f32 v73, v{p+1}, v{lr}"); e(f"v_fma_f32 v73, -v70, v{li}, v73")
        e("v_add_f32 v71, v71, v71")
        e(f"v_mul_f32 v{p+2}, v72, v71"); e(f"v_mul_f32 v{p+3}, v73, v71")
        csq(64, 65, p, p+1); csq(66, 67, 64, 65); csq(64, 65, 66, 67)
        csq(p+4, p+5, 64, 65)
        csq(p+6, p+7, p+4, p+5)
        csq(64, 65, p+6, p+7); csq(66, 67, 64, 65); csq(p+8, p+9, 66, 67)
    e("s_barrier")
    stamp(1)
    if stamps: e("s_memtime s[100:101]")
    T = LdsTracker(a)
    fa = lambda idx: 64 + (idx % 4)*4
    fb = lambda p, n: 80 + p*16 + n*4
    acc = lambda m, n: 128 + (m*4 + n)*4
    Gs = [(k, s, m) for k in range(NK) for s in range(2) for m in range(8)]
    def rdA(g):
        k, s, m = Gs[g]; st = k % 3
        return (f"ds_read_b128 {vr(fa(g),4)}, v{16 + st*2 + s} offset:{m*2048}", fa(g))
    def rdB(k, s, n):
        st = k % 3; p = s & 1
        return (f"ds_read_b128 {vr(fb(p,n),4)}, v{22 + st*2 + s} offset:{(n>>1)*4096 + (n&1)*2048}", fb(p,n))
    D = 3
    for n in range(4): T.read(*rdB(0,0,n))
    for g in range(D): T.read(*rdA(g))
    for g, (k, s, m) in enumerate(Gs):
        p = s & 1
        if s == 0 and m == 0 and k == 10:
            e("v_mov_b32 v14, 0"); e("global_load_dword v15, v14, s[32:33] sc0 sc1")
        if s == 0 and m == 0 and k == 13:
            e("s_waitcnt vmcnt(0)")
            e("v_readfirstlane_b32 s74, v15")
            e("s_cmp_lg_u32 s3, 0"); e("s_cbranch_scc1 LC_noxid")
            e("s_cmp_eq_u32 s74, 0"); e("s_cbranch_scc1 LC_noxid")
            e("s_and_b32 s75, s74, 0xfffffff0"); e("s_or_b32 s75, s75, s73"); e("s_or_b32 s75, s75, 8")
            e("s_lshl_b32 s76, s16, 7"); e("s_lshl_b32 s77, s17, 2"); e("s_add_u32 s76, s76, s77"); e(f"s_add_u32 s76, s76, {WS_XID}")
            e("v_mov_b32 v12, s75"); e("v_mov_b32 v13, s76")
            e("s_mov_b64 s[56:57], exec"); e("s_mov_b64 exec, 1")
            e("global_store_dword v13, v12, s[34:35] sc0 sc1")
            e("s_mov_b64 exec, s[56:57]")
            a.label("LC_noxid")
        extra = []
        if g + D < len(Gs): extra.append(("A", g + D))
        if s == 0 and 1 <= m <= 4: extra.append(("B", k, 1, m-1))
        if s == 1 and k + 1 < NK and m >= 5:
            for n in {5: [0, 1], 6: [2], 7: [3]}[m]: extra.append(("B", k+1, 0, n))
        if s == 1 and m == 8 - D and k + 1 < NK:
            T.drain()
            if opt.get("kst") and k > 0: e(f"v_writelane_b32 v62, s60, {k-1}")
            e("s_barrier")
            if opt.get("kst"): e("s_memtime s[60:61]")
        order = range(4) if (m % 2 == 0) else range(3, -1, -1)
        for ii, n in enumerate(order):
            T.need([fa(g), fb(p,n)])
            d = acc(m, n)
            e(f"v_mfma_f32_16x16x32_bf16 {vr(d,4)}, {vr(fa(g),4)}, {vr(fb(p,n),4)}, {vr(d,4)}")
            if ii < len(extra):
                x = extra[ii]
                T.read(*(rdA(x[1]) if x[0] == "A" else rdB(x[1], x[2], x[3])))
    stamp(2)
    if opt.get("kst"):
        e("s_waitcnt lgkmcnt(0)"); e("v_writelane_b32 v62, s60, 14")
        e("s_lshl_b32 s41, s2, 2"); e("s_add_u32 s41, s41, s3"); e("s_lshl_b32 s41, s41, 8"); e("s_add_u32 s41, s41, 0x4400000")
        e("s_mov_b32 s44, s34"); e("s_mov_b32 s45, s35"); e("s_mov_b32 s46, 0x8000000"); e("s_mov_b32 s47, 0x00020000")
        e("v_lshlrev_b32 v63, 2, v2"); e("buffer_store_dword v62, v63, s[44:47], s41 offen")
    if stamps:
        e("s_waitcnt lgkmcnt(0)"); e("s_mov_b32 s99, s100"); e("s_memtime s[100:101]"); e("s_waitcnt lgkmcnt(0)"); e("s_sub_u32 s99, s100, s99")
    e("s_mov_b32 s44, s34"); e("s_mov_b32 s45, s35"); e(f"s_mov_b32 s46, {WS_USED}"); e("s_mov_b32 s47, 0x00020000")
    e("s_nop 7")
    PKB_RE = "op_sel:[0,0,0] op_sel_hi:[0,1,1]"
    PKB_IM = "op_sel:[1,0,0] op_sel_hi:[1,1,1]"
    NEG0 = "neg_lo:[1,0,0] neg_hi:[1,0,0]"
    def U(i, aa, part): return acc(i >> 1, part*2 + aa) + 2*(i & 1)
    def step4(aa, dre, dim, pre, pim, ure, uim):
        L = vr(P(aa), 2)
        return [f"v_pk_fma_f32 {vr(dre,2)}, {L}, {vr(pre,2)}, {vr(ure,2)} {PKB_RE}",
                f"v_pk_fma_f32 {vr(dim,2)}, {L}, {vr(pim,2)}, {vr(uim,2)} {PKB_RE}",
                f"v_pk_fma_f32 {vr(dre,2)}, {L}, {vr(pim,2)}, {vr(dre,2)} {PKB_IM} {NEG0}",
                f"v_pk_fma_f32 {vr(dim,2)}, {L}, {vr(pre,2)}, {vr(dim,2)} {PKB_IM}"]
    def interleave(l0, l1):
        for x, y in zip(l0, l1): e(x); e(y)
    cur = [(U(0,aa,0), U(0,aa,1)) for aa in range(2)]
    for i in range(1, 16):
        nx = [(112 + aa*8 + (i & 1)*4, 114 + aa*8 + (i & 1)*4) for aa in range(2)]
        interleave(*[step4(aa, nx[aa][0], nx[aa][1], cur[aa][0], cur[aa][1], U(i,aa,0), U(i,aa,1)) for aa in range(2)])
        cur = nx
    def cmul_add(dre, dim, are, aim, bre, bim, cre, cim):
        e(f"v_fma_f32 v{dre}, v{are}, v{bre}, {cre}"); e(f"v_fma_f32 v{dim}, v{are}, v{bim}, {cim}")
        e(f"v_fma_f32 v{dre}, -v{aim}, v{bim}, v{dre}"); e(f"v_fma_f32 v{dim}, v{aim}, v{bre}, v{dim}")
    for aa in range(2):
        sre, sim = cur[aa]
        cmul_add(28+2*aa, 29+2*aa, P(aa)+4, P(aa)+5, sre, sim, f"v{sre+1}", f"v{sim+1}")
    e("v_mul_u32_u24 v5, 80, v9"); e("s_lshl_b32 s22, s20, 5"); e(f"s_add_u32 s22, s22, {K1_SEG}")
    e("v_lshl_add_u32 v6, v4, 3, v5"); e("v_add_u32 v6, s22, v6")
    e("ds_write_b64 v6, v[28:29]"); e(f"ds_write_b64 v6, v[30:31] offset:{16*80}")
    guard_init()
    a.label("LC_nn")
    guard()
    e("s_waitcnt vmcnt(0)")
    e("v_cmp_eq_u32 vcc, 0, v15"); e("s_nop 4"); e("s_cbranch_vccz LC_nn2")
    e("s_sleep 2"); e("global_load_dword v15, v14, s[32:33] sc0 sc1"); e("s_branch LC_nn")
    a.label("LC_nn2")
    e(f"v_mov_b32 v7, {K1_NONCE}"); e("ds_write_b32 v7, v15")
    e("s_waitcnt lgkmcnt(0)")
    e("s_barrier")
    e(f"v_add_u32 v5, {K1_SEG}, v5")
    SG = lambda aa, s: 64 + 16*aa + 2*s
    for aa in range(2):
        for q in range(4):
            e(f"ds_read_b128 {vr(64+16*aa+4*q,4)}, v5 offset:{aa*16*80 + 16*q}")
    def cfma(d, L, x, s):
        e(f"v_pk_fma_f32 {vr(d,2)}, {vr(L,2)}, {vr(x,2)}, {vr(s,2)} op_sel:[0,0,0] op_sel_hi:[0,1,1]")
        e(f"v_pk_fma_f32 {vr(d,2)}, {vr(L,2)}, {vr(x,2)}, {vr(d,2)} op_sel:[1,1,0] op_sel_hi:[1,0,1] neg_lo:[1,0,0]")
    e("s_waitcnt lgkmcnt(0)")
    X = [SG(0,0), SG(1,0)]
    for s in range(1, 8):
        for aa in range(2):
            d = 96 + 4*aa + 2*(s & 1)
            cfma(d, P(aa)+6, X[aa], SG(aa, s)); X[aa] = d
    assert X == [98, 102]
    e("v_and_b32 v7, 1, v4"); e("v_cmp_ne_u32 vcc, 0, v7"); e("s_nop 1")
    e("v_cndmask_b32 v104, v98, v102, vcc"); e("v_cndmask_b32 v106, v99, v103, vcc")
    e(f"v_cndmask_b32 v32, v{P(0)+8}, v{P(1)+8}, vcc"); e(f"v_cndmask_b32 v33, v{P(0)+9}, v{P(1)+9}, vcc")
    e("v_mov_b32 v105, v15"); e("v_mov_b32 v107, v15")
    e("s_lshl_b32 s22, s14, 3"); e("s_add_u32 s22, s22, s13"); e("s_lshl_b32 s22, s22, 10"); e(f"s_add_u32 s22, s22, {WS_AGG}")
    e("v_and_b32 v11, 31, v2"); e("s_lshl_b32 s23, s21, 5"); e("v_add_u32 v11, s23, v11"); e("v_lshlrev_b32 v11, 4, v11")
    e("s_cmp_lg_u32 s20, 0"); e("s_cbranch_scc1 LC_nopub")
    e("s_mov_b64 s[56:57], exec"); e("s_mov_b32 exec_hi, 0")
    e("buffer_store_dwordx4 v[104:107], v11, s[44:47], s22 offen sc0 sc1")
    e("s_mov_b64 exec, s[56:57]")
    a.label("LC_nopub")
    e("s_lshl_b32 s23, s14, 13"); e(f"s_add_u32 s23, s23, {WS_AGG}")
    GRL = [16, 20, 24, 28, 36, 108, 112]
    def poll_loads(tag):
        for cp in range(7):
            e(f"s_cmp_le_u32 s13, {cp}"); e(f"s_cbranch_scc1 LC_pl{tag}")
            e(f"s_add_u32 s24, s23, {cp*1024}")
            e(f"buffer_load_dwordx4 {vr(GRL[cp],4)}, v11, s[44:47], s24 offen sc0 sc1")
        a.label(f"LC_pl{tag}")
    poll_loads("a")
    e("s_lshl_b32 s25, s16, 7"); e(f"s_add_u32 s25, s25, {WS_XID}")
    e("v_and_b32 v35, 31, v2"); e("v_lshlrev_b32 v35, 2, v35")
    e("buffer_load_dword v34, v35, s[44:47], s25 offen sc0 sc1")
    for i in range(16):
        ops = []
        for aa in range(2):
            r0, r1 = U(i,aa,0), U(i,aa,1); t = 120 + 2*aa; C = vr(P(aa)+2, 2)
            ops.append([f"v_pk_mul_f32 {vr(t,2)}, {C}, {vr(r0,2)} op_sel:[0,0] op_sel_hi:[0,1]",
                        f"v_pk_mul_f32 {vr(r0,2)}, {C}, {vr(r0,2)} op_sel:[1,0] op_sel_hi:[1,1]",
                        f"v_pk_fma_f32 {vr(r0,2)}, {C}, {vr(r1,2)}, {vr(r0,2)} {PKB_RE}",
                        f"v_pk_fma_f32 {vr(r1,2)}, {C}, {vr(r1,2)}, {vr(t,2)} {PKB_IM} {NEG0}"])
        interleave(*ops)
    guard_init()
    a.label("LC_poll")
    guard()
    e("s_waitcnt vmcnt(0)")
    e("s_mov_b64 s[56:57], 0")
    for cp in range(7):
        e(f"s_cmp_le_u32 s13, {cp}"); e("s_cbranch_scc1 LC_chk")
        e(f"v_cmp_ne_u32 vcc, v{GRL[cp]+1}, v15"); e("s_or_b64 s[56:57], s[56:57], vcc")
        e(f"v_cmp_ne_u32 vcc, v{GRL[cp]+3}, v15"); e("s_or_b64 s[56:57], s[56:57], vcc")
    a.label("LC_chk")
    e("s_cmp_eq_u64 s[56:57], 0"); e("s_cbranch_scc1 LC_got")
    e("s_sleep 1")
    poll_loads("b")
    e("s_branch LC_poll")
    a.label("LC_got")
    stamp(3)
    e("s_barrier")
    e("v_mov_b32 v96, 0"); e("v_mov_b32 v97, 0")
    for cp in range(7):
        e(f"s_cmp_le_u32 s13, {cp}"); e("s_cbranch_scc1 LC_hin")
        e(f"v_mov_b32 v{GRL[cp]+1}, v{GRL[cp]+2}")
        cfma(98, 32, 96, GRL[cp])
        e("v_mov_b32 v96, v98"); e("v_mov_b32 v97, v99")
    a.label("LC_hin")
    e("v_and_b32 v5, 47, v2"); e("v_lshlrev_b32 v5, 2, v5"); e("v_or_b32 v6, 64, v5")
    e("ds_bpermute_b32 v100, v5, v96"); e("ds_bpermute_b32 v101, v5, v97")
    e("ds_bpermute_b32 v102, v6, v96"); e("ds_bpermute_b32 v103, v6, v97")
    e("v_readfirstlane_b32 s74, v15")
    e("s_and_b32 s75, s74, 0xfffffff0"); e("s_or_b32 s75, s75, s73"); e("s_or_b32 s75, s75, 8")
    e("v_cmp_ne_u32 vcc, s75, v34"); e("s_nop 1")
    e("s_mov_b64 s[78:79], vcc")
    e("s_waitcnt lgkmcnt(0)")
    for g_ in range(4):
        lo = (0xFFFF << (16*g_)) & 0xFFFFFFFF; hi = (0xFFFF << (16*g_)) >> 32
        e(f"s_mov_b32 s{60+2*g_}, 0x{lo:x}"); e(f"s_mov_b32 s{61+2*g_}, 0x{hi:x}")
    def prefix(wm):
        Pc = [100, 102]
        for s in range(4*wm + 4):
            if s >= 4*wm:
                g_ = s - 4*wm
                for aa in range(2):
                    if g_ == 0:
                        e(f"v_mov_b32 v{104+2*aa}, v{Pc[aa]}"); e(f"v_mov_b32 v{105+2*aa}, v{Pc[aa]+1}")
                    else:
                        e(f"v_cndmask_b32 v{104+2*aa}, v{104+2*aa}, v{Pc[aa]}, s[{60+2*g_}:{61+2*g_}]")
                        e(f"v_cndmask_b32 v{105+2*aa}, v{105+2*aa}, v{Pc[aa]+1}, s[{60+2*g_}:{61+2*g_}]")
            if s < 4*wm + 3:
                for aa in range(2):
                    d = 108 + 4*aa + 2*(s & 1)
                    cfma(d, P(aa)+6, Pc[aa], SG(aa, s)); Pc[aa] = d
    e("s_cmp_eq_u32 s20, 0"); e("s_cbranch_scc0 LC_wm1")
    prefix(0); e("s_branch LC_wmj")
    a.label("LC_wm1"); prefix(1)
    a.label("LC_wmj")
    for aa in range(2):
        sre, sim = cur[aa]; h = 104 + 2*aa; p = P(aa)
        cmul_add(24, 25, p+4, p+5, h, h+1, f"v{sre}", f"v{sim}")
        cmul_add(16+4*aa, 18+4*aa, p+2, p+3, h, h+1, "0", "0")
        cmul_add(17+4*aa, 19+4*aa, p+2, p+3, 24, 25, "0", "0")
    e("s_lshl_b32 s22, s13, 1"); e("s_add_u32 s22, s22, s20"); e("s_lshl_b32 s22, s22, 6")
    e("s_lshl_b32 s23, s70, 5"); e("s_add_u32 s22, s22, s23")
    e("s_and_b32 s23, s14, 15"); e("s_add_u32 s22, s22, s23"); e("s_lshl_b32 s22, s22, 14")
    if HB: e(f"s_add_u32 s22, s22, {HB}")
    e("s_add_u32 s23, s22, 262144")
    e("v_lshlrev_b32 v5, 12, v4"); e("v_lshl_add_u32 v5, v9, 4, v5")
    hflags = opt.get("hflags", "")
    prev = [(16, 18), (20, 22)]
    for i in range(16):
        interleave(*[step4(aa, U(i,aa,1), U(i,aa,0), prev[aa][0], prev[aa][1], U(i,aa,1), U(i,aa,0)) for aa in range(2)])
        prev = [(U(i,aa,1), U(i,aa,0)) for aa in range(2)]
        if (i & 7) == 7:
            h = i >> 3
            idx = 0
            for part in range(2):
                for aa in range(2):
                    for sub in range(2):
                        d = 64 + 32*h + idx*4; idx += 1
                        neg = "-" if part else ""
                        for q in range(4):
                            src = acc(4*h + q, (1 - part)*2 + aa)
                            e(f"v_cvt_pk_bf16_f32 v{d+q}, {neg}v{src+sub}, {neg}v{src+2+sub}")
                        if not opt.get("nostore"): e(f"buffer_store_dwordx4 {vr(d,4)}, v5, s[44:47], s{23 if part else 22} offen offset:{aa*256 + (2*sub + h)*1024} {hflags}")
    e("s_waitcnt vmcnt(0)")
    if opt.get("forcewb"):
        e("s_mov_b64 s[78:79], -1")
    e("s_cmp_eq_u64 s[78:79], 0"); e("s_cbranch_scc1 LC_nowb")
    e("buffer_wbl2 sc1"); e("s_waitcnt vmcnt(0)")
    a.label("LC_nowb")
    e("s_lshl_b32 s24, s16, 2"); e("s_and_b32 s25, s13, 1"); e("s_lshl_b32 s25, s25, 1"); e("s_add_u32 s24, s24, s25"); e("s_add_u32 s24, s24, s20")
    e("s_lshl_b32 s24, s24, 7"); e("s_and_b32 s25, s14, 15"); e("s_lshl_b32 s25, s25, 1"); e("s_add_u32 s25, s25, s21"); e("s_lshl_b32 s25, s25, 2")
    e("s_add_u32 s24, s24, s25"); e(f"s_add_u32 s24, s24, {WS_HF}")
    e("v_mov_b32 v5, 0")
    e("s_mov_b64 s[56:57], exec"); e("s_mov_b64 exec, 1")
    e("buffer_store_dword v15, v5, s[44:47], s24 offen sc0 sc1")
    e("s_mov_b64 exec, s[56:57]")
    stamp(4)
    e("s_barrier")
    if opt.get("onepoll"): e("s_barrier")

    e("s_load_dwordx2 s[4:5], s[0:1], 0")
    e("s_load_dwordx2 s[36:37], s[0:1], 64")
    e("s_load_dwordx2 s[38:39], s[0:1], 136")
    e("s_load_dwordx2 s[40:41], s[0:1], 152")
    e("s_lshl_b32 s22, s72, 7"); e("s_lshl_b32 s23, s20, 6"); e("s_add_u32 s22, s22, s23")
    e("v_lshlrev_b32 v5, 2, v4"); e("v_add_u32 v5, s22, v5")
    e("s_lshl_b32 s22, s71, 7"); e("s_lshl_b32 s23, s21, 6"); e("s_add_u32 s22, s22, s23")
    e("s_lshl_b32 s23, s70, 5"); e("s_add_u32 s22, s22, s23")
    e("v_add_u32 v6, s22, v3")
    e("v_lshlrev_b32 v7, 1, v5")
    e("v_lshl_add_u32 v8, v6, 11, v7")
    e("v_lshlrev_b32 v9, 4, v6"); e(f"v_add_u32 v9, {WS_G}, v9")
    e("v_lshlrev_b32 v10, 2, v5"); e("v_lshl_add_u32 v10, v6, 12, v10")
    e("v_bfe_u32 v12, v2, 1, 3"); e("v_xor_b32 v12, v12, v4"); e("v_lshlrev_b32 v12, 4, v12"); e("v_lshl_add_u32 v12, v3, 7, v12")
    e("s_lshl_b32 s22, s20, 13"); e(f"s_add_u32 s22, s22, {K2_COFF}")
    for se in range(2):
        for s in range(2):
            e(f"v_xor_b32 v13, {64*s}, v12"); e(f"v_add_u32 v13, {se*2*K2_STAGE}, v13"); e(f"v_add_u32 v{16+se*2+s}, s22, v13")
    e("v_bfe_u32 v12, v2, 1, 1"); e(f"v_mul_u32_u24 v12, {K2_HP}, v12")
    e("v_bfe_u32 v13, v2, 2, 2"); e("v_lshl_add_u32 v13, v4, 3, v13"); e("v_lshl_add_u32 v12, v13, 4, v12")
    e("v_and_b32 v13, 1, v2"); e("v_lshl_add_u32 v12, v13, 3, v12")
    e(f"s_mul_i32 s22, s21, {8*K2_HP}")
    e("v_add_u32 v20, s22, v12"); e(f"v_add_u32 v21, {2*K2_STAGE}, v20")
    acc2 = lambda md, nt: 128 + (md*4 + nt)*4
    for r in range(128, 192): e(f"v_mov_b32 v{r}, 0")
    e("s_waitcnt lgkmcnt(0)")
    e("s_barrier")
    stamp(5)
    T = LdsTracker(a)
    fa2 = lambda p, m: 64 + p*32 + m*4
    fb2 = lambda p, n: 64 + p*32 + 16 + n*4
    def rd2(k, s):
        st = k % K2_NST; se = st // 2; off = (st % 2) * K2_STAGE; p = s & 1
        def B(n):
            return [(f"ds_read_b64_tr_b16 {vr(fb2(p,n),2)}, v{20+se} offset:{off + 2*K2_HP*n + 512*s}", (fb2(p,n), 0)),
                    (f"ds_read_b64_tr_b16 {vr(fb2(p,n)+2,2)}, v{20+se} offset:{off + 2*K2_HP*n + 512*s + 64}", (fb2(p,n), 1))]
        def A(m):
            return [(f"ds_read_b128 {vr(fa2(p,m),4)}, v{16+se*2+s} offset:{off + m*2048}", (fa2(p,m), 0))]
        return A(0) + B(0) + B(1) + B(2) + B(3) + A(1) + A(2) + A(3)
    for r in rd2(0, 0): T.read(*r)
    for k in range(NK2):
        for s in range(2):
            p = s & 1
            if s == 1:
                nxt = []
                if k + 1 < NK2:
                    T.drain()
                    if opt.get("kst") and k > 0: e(f"v_writelane_b32 v62, s60, {k-1}")
                    e("s_barrier"); nxt = rd2(k+1, 0)
                    if opt.get("kst"): e("s_memtime s[60:61]")
            else:
                nxt = rd2(k, 1)
            i = 0
            for m in range(4):
                order = range(4) if (m % 2 == 0) else range(3, -1, -1)
                for n in order:
                    T.need([(fa2(p,m),0), (fb2(p,n),0), (fb2(p,n),1)])
                    d = acc2(m, n)
                    e(f"v_mfma_f32_16x16x32_bf16 {vr(d,4)}, {vr(fa2(p,m),4)}, {vr(fb2(p,n),4)}, {vr(d,4)}")
                    if i < len(nxt): T.read(*nxt[i])
                    i += 1
    stamp(6)
    e("s_barrier")
    e("v_lshrrev_b32 v22, 1, v4"); e("s_lshl_b32 s22, s20, 3"); e("v_add_u32 v22, s22, v22")
    e("v_and_b32 v23, 1, v4"); e("v_lshlrev_b32 v23, 3, v23"); e("v_lshl_add_u32 v23, v3, 8, v23"); e("s_lshl_b32 s22, s21, 13"); e("v_add_u32 v23, s22, v23")
    for md in range(4):
        e(f"v_add_u32 v24, {2*md}, v22"); e("v_xor_b32 v24, v24, v3"); e("v_lshl_add_u32 v24, v24, 4, v23")
        for nt in range(2):
            e(f"ds_read_b64 {vr(192+(nt*4+md)*2,2)}, v24 offset:{nt*4096}")
    e("s_lshl_b32 s22, s20, 7"); e("v_lshlrev_b32 v24, 3, v4"); e("v_add_u32 v24, s22, v24")
    for md in range(4):
        e(f"ds_read_b64 {vr(208+2*md,2)}, v24 offset:{16384 + 32*md}"); e(f"ds_read_b64 {vr(216+2*md,2)}, v24 offset:{16640 + 32*md}")
    e("s_lshl_b32 s22, s21, 9"); e("v_lshlrev_b32 v25, 4, v3"); e("v_add_u32 v25, s22, v25")
    e("ds_read_b128 v[224:227], v25 offset:16896"); e("ds_read_b128 v[228:231], v25 offset:17152")
    if opt.get("kst"):
        e("s_waitcnt lgkmcnt(0)"); e("v_writelane_b32 v62, s60, 30")
        e("s_lshl_b32 s26, s2, 2"); e("s_add_u32 s26, s26, s3"); e("s_lshl_b32 s26, s26, 8"); e("s_add_u32 s26, s26, 0x4500000")
        e("s_mov_b32 s46, 0x8000000")
        e("v_lshlrev_b32 v63, 2, v2"); e("buffer_store_dword v62, v63, s[44:47], s26 offen")
        e(f"s_mov_b32 s46, {WS_USED}")
    e("s_lshl_b32 s22, s2, 2"); e("s_add_u32 s22, s22, s3"); e("s_lshl_b32 s22, s22, 13"); e(f"s_add_u32 s22, s22, {WS_XCH}")
    e("s_xor_b32 s23, s2, 1"); e("s_lshl_b32 s23, s23, 2"); e("s_add_u32 s23, s23, s3")
    e("s_lshl_b32 s24, s23, 7"); e(f"s_add_u32 s24, s24, {WS_FLG}")
    e("s_lshl_b32 s23, s23, 13"); e(f"s_add_u32 s23, s23, {WS_XCH}")
    e("s_lshl_b32 s25, s2, 2"); e("s_add_u32 s25, s25, s3"); e("s_lshl_b32 s25, s25, 7"); e(f"s_add_u32 s25, s25, {WS_FLG}")
    e("v_lshlrev_b32 v12, 4, v2"); e("v_add_u32 v13, 4096, v12")
    e("s_cmp_eq_u32 s70, 0"); e("s_cbranch_scc1 LT_sendA")
    def send(nt0):
        for idx in range(8):
            md, nt = idx >> 1, nt0 + (idx & 1)
            e(f"buffer_store_dwordx4 {vr(acc2(md,nt),4)}, v{13 if idx >= 4 else 12}, s[44:47], s22 offen offset:{(idx & 3)*1024} sc0 sc1")
    def keep(nt0):
        for idx in range(8):
            md, nt = idx >> 1, nt0 + (idx & 1)
            for r in range(4): e(f"v_mov_b32 v{96+idx*4+r}, v{acc2(md,nt)+r}")
    e("s_nop 3")
    send(0); keep(2); e("s_branch LT_sent")
    a.label("LT_sendA")
    e("s_nop 3")
    send(2); keep(0)
    a.label("LT_sent")
    e("s_waitcnt vmcnt(0) lgkmcnt(0)")
    e("v_mov_b32 v30, 0")
    e("s_mov_b64 s[56:57], exec"); e("s_mov_b64 exec, 1")
    e("buffer_store_dword v15, v30, s[44:47], s25 offen sc0 sc1")
    e("s_mov_b64 exec, s[56:57]")
    guard_init()
    a.label("LT_g")
    guard()
    e("v_cmp_ne_u32 vcc, v225, v15"); e("s_mov_b64 s[56:57], vcc")
    e("v_cmp_ne_u32 vcc, v227, v15"); e("s_or_b64 s[56:57], s[56:57], vcc")
    e("v_cmp_ne_u32 vcc, v229, v15"); e("s_or_b64 s[56:57], s[56:57], vcc")
    e("v_cmp_ne_u32 vcc, v231, v15"); e("s_or_b64 s[56:57], s[56:57], vcc")
    e("s_cmp_eq_u64 s[56:57], 0"); e("s_cbranch_scc1 LT_gok")
    e("s_sleep 1")
    e(f"global_load_dwordx4 v[224:227], v9, s[34:35] sc0 sc1"); e(f"global_load_dwordx4 v[228:231], v9, s[34:35] offset:256 sc0 sc1")
    e("s_waitcnt vmcnt(0)"); e("s_branch LT_g")
    a.label("LT_gok")
    e("buffer_load_dword v31, v30, s[44:47], s24 offen sc0 sc1")
    for md in range(4):
        for h in range(2):
            e(f"v_lshlrev_b32 v{232+4*md+2*h}, 16, v{208+2*md+h}"); e(f"v_and_b32 v{233+4*md+2*h}, 0xffff0000, v{208+2*md+h}")
            e(f"v_lshlrev_b32 v{64+4*md+2*h}, 16, v{216+2*md+h}"); e(f"v_and_b32 v{65+4*md+2*h}, 0xffff0000, v{216+2*md+h}")
    for idx in range(8):
        md, nt = idx >> 1, idx & 1
        xr = 192 + (nt*4+md)*2; g = 224 + 4*nt; out = 32 + idx*4
        for h in range(2):
            e(f"v_lshlrev_b32 v22, 16, v{xr+h}"); e(f"v_and_b32 v23, 0xffff0000, v{xr+h}")
            e(f"v_pk_mul_f32 v[24:25], v[22:23], {vr(232+4*md+2*h,2)}")
            e(f"v_pk_mul_f32 v[26:27], v[22:23], {vr(64+4*md+2*h,2)}")
            e("v_cvt_pk_bf16_f32 v24, v24, v25"); e("v_cvt_pk_bf16_f32 v26, v26, v27")
            e("v_lshlrev_b32 v22, 16, v24"); e("v_and_b32 v23, 0xffff0000, v24")
            e("v_lshlrev_b32 v28, 16, v26"); e("v_and_b32 v29, 0xffff0000, v26")
            e(f"v_pk_mul_f32 {vr(out+2*h,2)}, {vr(g,2)}, v[22:23] op_sel:[0,0] op_sel_hi:[0,1]")
            e(f"v_pk_fma_f32 {vr(out+2*h,2)}, {vr(g+2,2)}, v[28:29], {vr(out+2*h,2)} op_sel:[0,0,0] op_sel_hi:[0,1,1]")
    e("s_cmp_eq_u32 s70, 0"); e("s_cselect_b64 s[56:57], 0, -1")
    for nt in range(2):
        e(f"v_cndmask_b32 v{248+2*nt}, v{224+4*nt}, v{226+4*nt}, s[56:57]")
        e(f"v_cndmask_b32 v{249+2*nt}, v{226+4*nt}, v{224+4*nt}, s[56:57]")
    for idx in range(8):
        nt = idx & 1
        for h in range(2):
            e(f"v_pk_fma_f32 {vr(32+idx*4+2*h,2)}, {vr(248+2*nt,2)}, {vr(96+idx*4+2*h,2)}, {vr(32+idx*4+2*h,2)} op_sel:[0,0,0] op_sel_hi:[0,1,1]")
    guard_init()
    a.label("LT_poll")
    guard()
    e("s_waitcnt vmcnt(0)")
    e("v_cmp_ne_u32 vcc, v31, v15"); e("s_nop 4"); e("s_cbranch_vccz LT_got")
    e("s_sleep 1")
    e("buffer_load_dword v31, v30, s[44:47], s24 offen sc0 sc1")
    e("s_branch LT_poll")
    a.label("LT_got")
    stamp(7)
    for idx in range(8):
        e(f"buffer_load_dwordx4 {vr(64+idx*4,4)}, v{13 if idx >= 4 else 12}, s[44:47], s23 offen offset:{(idx & 3)*1024} sc0 sc1")
    e("v_add_u32 v11, 0x10000, v10")
    oflags = opt.get("oflags", "")
    for idx in range(8):
        md, nt = idx >> 1, idx & 1
        e(f"s_waitcnt vmcnt(7)")
        for h in range(2):
            e(f"v_pk_fma_f32 {vr(32+idx*4+2*h,2)}, {vr(248+2*nt,2)}, {vr(64+idx*4+2*h,2)}, {vr(32+idx*4+2*h,2)} op_sel:[1,0,0] op_sel_hi:[1,1,1]")
        e(f"global_store_dwordx4 v{11 if nt else 10}, {vr(32+idx*4,4)}, s[40:41] offset:{md*64} {oflags}")
    if stamps:
        e("s_waitcnt vmcnt(0)")
        e("s_memrealtime s[96:97]"); e("s_waitcnt lgkmcnt(0)")
        e("s_lshl_b32 s41, s2, 2"); e("s_add_u32 s41, s41, s3"); e("s_lshl_b32 s41, s41, 6"); e("s_add_u32 s41, s41, 0x4000000")
        e("s_mov_b32 s46, 0x8000000")
        e("v_mov_b32 v3, 0")
        for i in range(9):
            e(f"v_mov_b32 v4, s{80+2*i}"); e(f"buffer_store_dword v4, v3, s[44:47], s41 offen offset:{4*i}")
        e("v_mov_b32 v4, s78"); e(f"buffer_store_dword v4, v3, s[44:47], s41 offen offset:36")
        e("v_mov_b32 v4, s99"); e(f"buffer_store_dword v4, v3, s[44:47], s41 offen offset:40")
        e("v_mov_b32 v4, s73"); e(f"buffer_store_dword v4, v3, s[44:47], s41 offen offset:44")
    if opt.get("dbgspan"):
        e("s_waitcnt vmcnt(0)")
        e("s_memrealtime s[96:97]"); e("s_waitcnt lgkmcnt(0)")
        e("s_cmp_lg_u32 s3, 0"); e("s_cbranch_scc1 L_end")
        e("s_mov_b64 exec, 1")
        for (slot, reg) in ((1, 96), (2, 84), (3, 86), (4, 88), (5, 90), (6, 92), (7, 94), (8, 82)):
            e(f"v_mov_b32 v4, s{reg}"); e(f"v_mov_b32 v3, {4*slot}"); e("global_atomic_umax v3, v4, s[32:33]")
        e("v_mov_b32 v4, s80"); e("v_not_b32 v4, v4"); e("v_mov_b32 v3, 36"); e("global_atomic_umax v3, v4, s[32:33]")
    a.label("L_end")
    e("s_endpgm")

def build(fname, opt):
    a = Asm()
    gen(a, opt)
    txt = a.text()
    if opt.get("scope", "sc0 sc1") != "sc0 sc1":
        txt = txt.replace("sc0 sc1", opt["scope"])
    open(fname, "w").write(file_text([(None, (256,1,1), (512,1,1), LDS_SIZE)], txt, [kernel_desc(NAME + "_kernel", 256, 102)]))

if __name__ == "__main__":
    F = dict(scope="sc1", earlyC=0, delaypoll=32, tlb=6, gk=None, cpf="spread")
    build("fu.s", F)
    build("fu_span.s", dict(F, dbgspan=1))
```
